```python
import torch

def _softmax(x, axis=-1):
    return torch.softmax(x, dim=axis)
def _gelu(x):
    return torch.nn.functional.gelu(x, approximate="tanh")
def _silu(x):
    return torch.nn.functional.silu(x)
def _sigmoid(x):
    return torch.sigmoid(x)
def _layernorm(x, axis=-1, eps=1e-5):
    m = x.mean(dim=axis, keepdim=True)
    v = x.var(dim=axis, keepdim=True, unbiased=False)
    return (x - m) / torch.sqrt(v + eps)
def _scatter_add(tgt, idx, src, axis=0):
    return tgt.clone().index_add_(axis, idx, src)
def _segment_sum(src, seg, n):
    out = torch.zeros((n,) + src.shape[1:], dtype=src.dtype)
    return out.index_add_(0, seg, src)
def _pad(x, pw):
    flat = tuple(v for pair in reversed(pw) for v in pair)
    return torch.nn.functional.pad(x, flat)

kernel_name = 'parallel_sum__mha_block__mixer_channel_mlp__prompt'

def setup_inputs():

    _w = (lambda a: (lambda t: t.to(torch.bfloat16) if t.is_floating_point() else t)(torch.as_tensor(a)))
    def _A_setup():
        B, S, D, H = 1, 2048, 640, 32
        return {
            "x": _w((lambda *s: torch.randn(*s, dtype=torch.bfloat16) * 0.05)(B, S, D)),
            "wqkv": _w((lambda *s: torch.randn(*s, dtype=torch.bfloat16) * 0.05)(D, 3 * D)),
            "wo": _w((lambda *s: torch.randn(*s, dtype=torch.bfloat16) * 0.05)(D, D)),
        }
    _A_in = _A_setup()

    def _B_setup():
        B, S, D, F = 1, 2048, 640, 1536
        return {
            "x": _w((lambda *s: torch.randn(*s, dtype=torch.bfloat16) * 0.05)(B, S, D)),
            "w1": _w((lambda *s: torch.randn(*s, dtype=torch.bfloat16) * 3.2)(D, F) * (D ** -0.5)),
            "b1": _w((lambda *s: torch.randn(*s, dtype=torch.bfloat16) * 1.6)(F)),
            "w2": _w((lambda *s: torch.randn(*s, dtype=torch.bfloat16) * 0.1)(F, D) * (F ** -0.5)),
            "b2": _w((lambda *s: torch.randn(*s, dtype=torch.bfloat16) * 0.2)(D)),
        }
    _B_in = _B_setup()

    return {
        "A_x": _A_in["x"],
        "A_wqkv": _A_in["wqkv"],
        "A_wo": _A_in["wo"],
        "B_x": _B_in["x"],
        "B_w1": _B_in["w1"],
        "B_b1": _B_in["b1"],
        "B_w2": _B_in["w2"],
        "B_b2": _B_in["b2"],
    }

def reference(A_x, A_wqkv, A_wo, B_x, B_w1, B_b1, B_w2, B_b2):
    def _A_ref(x, wqkv, wo):
        B, S, D = x.shape
        H = 32
        Dh = D // H
        qkv = (lambda x, *d: x.permute(*d))((x @ wqkv).reshape(B, S, 3, H, Dh), 2, 0, 3, 1, 4)
        q, k, v = qkv[0], qkv[1], qkv[2]
        scores = torch.einsum("bhqd,bhkd->bhqk", q, k) * (Dh ** -0.5)
        p = _softmax(scores, axis=-1)
        o = torch.einsum("bhqk,bhkd->bhqd", p, v)
        return (lambda x, *d: x.permute(*d))(o, 0, 2, 1, 3).reshape(B, S, D) @ wo

    def _B_ref(x, w1, b1, w2, b2):
        y = _layernorm(x, axis=-1)
        h = _gelu(torch.einsum("bsd,df->bsf", y, w1) + b1)
        return torch.einsum("bsf,fd->bsd", h, w2) + b2

    x = A_x
    xn = _layernorm(x, axis=-1)
    return x + _A_ref(xn, A_wqkv, A_wo) + _B_ref(xn, B_w1, B_b1, B_w2, B_b2)
```

```python
class Asm:
    def __init__(self):
        self.lines = []
        self._lbl = 0
    def __call__(self, s):
        import re
        for ln in s.strip("\n").split("\n"):
            t = ln.strip()
            m = re.match(r"s_cselect_b32 (s\d+), (0x[0-9a-fA-F]+|\d+), (0x[0-9a-fA-F]+|\d+)(\s*;.*)?$", t)
            if m and int(m.group(2), 0) > 64 and int(m.group(3), 0) > 64:
                self.lines.append(f"    s_mov_b32 {m.group(1)}, {m.group(3)}")
                self.lines.append(f"    s_cselect_b32 {m.group(1)}, {m.group(2)}, {m.group(1)}")
                continue
            self.lines.append("    " + t if not t.endswith(":") else t)
    def label(self, name):
        self.lines.append(f"{name}:")
    def newlabel(self, base="L"):
        self._lbl += 1
        return f"{base}_{self._lbl}"
    def comment(self, s):
        self.lines.append(f"    ; {s}")
    def text(self):
        return "\n".join(self.lines) + "\n"

def vr(a, n=1):
    return f"v{a}" if n == 1 else f"v[{a}:{a+n-1}]"
def sr(a, n=1):
    return f"s{a}" if n == 1 else f"s[{a}:{a+n-1}]"

def kernel_header(name):
    return f""".globl {name}
.p2align 8
.type {name},@function
{name}:
"""

def kernel_desc(name, vgpr, sgpr=102, accum=None):
    if accum is None:
        accum = (vgpr + 3)//4*4
    return f""".p2align 6
.amdhsa_kernel {name}
  .amdhsa_next_free_vgpr {vgpr}
  .amdhsa_next_free_sgpr {sgpr}
  .amdhsa_accum_offset {accum}
  .amdhsa_group_segment_fixed_size 0
  .amdhsa_kernarg_size 88
  .amdhsa_user_sgpr_count 2
  .amdhsa_user_sgpr_kernarg_segment_ptr 1
  .amdhsa_system_sgpr_workgroup_id_x 1
.end_amdhsa_kernel
"""

KA_X, KA_WQKV, KA_WO, KA_BX, KA_W1, KA_B1, KA_W2, KA_B2, KA_OUT, KA_DBG, KA_WS = [8*i for i in range(11)]

WS_XN = 0
WS_Y  = 0x280000
WS_QF = 0x500000
WS_KV = 0x780000
WS_AF = 0xC80000
WS_WF = 0x1500000
WS_END = 0x1800000

def f32bits(x):
    import struct
    return struct.unpack("<I", struct.pack("<f", x))[0]
```

```python
from asmlib import *

def gen_k0():
    a = Asm()
    name = "k0_ln_kernel"
    a.lines.append(kernel_header(name))
    a(f"""
    s_cmp_ge_u32 s2, 392
    s_cbranch_scc1 K0_END
    s_load_dwordx2 s[4:5], s[0:1], {KA_X}
    s_load_dwordx2 s[6:7], s[0:1], {KA_WS}
    s_load_dwordx2 s[8:9], s[0:1], {KA_WO}
    s_load_dwordx2 s[10:11], s[0:1], {KA_W2}
    v_lshrrev_b32 v1, 6, v0
    v_and_b32 v2, 63, v0
    s_nop 0
    v_readfirstlane_b32 s3, v1
    s_waitcnt lgkmcnt(0)
    s_mov_b32 s16, s6
    s_and_b32 s17, s7, 0xffff
    s_mov_b32 s18, {WS_END}
    s_mov_b32 s19, 0x20000
    s_cmp_ge_u32 s2, 256
    s_cbranch_scc1 K0_RELAYOUT
    s_mov_b32 s12, s4
    s_and_b32 s13, s5, 0xffff
    s_mov_b32 s14, {2048*1280}
    s_mov_b32 s15, 0x20000
    s_lshl_b32 s20, s2, 3
    s_lshl_b32 s21, s3, 1
    s_add_u32 s20, s20, s21
    v_lshrrev_b32 v3, 5, v2
    v_add_u32 v3, s20, v3            ; row
    v_and_b32 v4, 31, v2
    s_movk_i32 s22, 1280
    v_mul_lo_u32 v3, v3, s22
    v_lshl_add_u32 v3, v4, 3, v3
    """)
    for j in range(5):
        a(f"buffer_load_dwordx2 v[{10+2*j}:{11+2*j}], v3, s[12:15], 0 offen offset:{256*j}")
    X = 20
    P = 40
    T = 50
    a("s_waitcnt vmcnt(0)")
    for j in range(10):
        a(f"v_lshlrev_b32 v{X+2*j}, 16, v{10+j}")
        a(f"v_and_b32 v{X+2*j+1}, 0xffff0000, v{10+j}")
    def allreduce(r):
        for sh in (8,4,2,1):
            a("s_nop 1")
            a(f"v_add_f32_dpp v{r}, v{r}, v{r} row_ror:{sh} row_mask:0xf bank_mask:0xf")
        a(f"ds_swizzle_b32 v{T+7}, v{r} offset:0x401F")
        a("s_waitcnt lgkmcnt(0)")
        a(f"v_add_f32 v{r}, v{r}, v{T+7}")
    def rne(r):
        a(f"v_cvt_pk_bf16_f32 v{r}, v{r}, v{r}")
        a(f"v_lshlrev_b32 v{r}, 16, v{r}")
    def ln(ws_off):
        S = T; M = T+1; A0 = T+2; A1 = T+3; R = T+4; D0 = T+5; D1 = T+6
        a(f"v_add_f32 v{S}, v{X}, v{X+1}")
        a(f"v_add_f32 v{A0}, v{X+2}, v{X+3}")
        for j in range(4, 20, 2):
            a(f"v_add_f32 v{S}, v{S}, v{X+j}")
            a(f"v_add_f32 v{A0}, v{A0}, v{X+j+1}")
        a(f"v_add_f32 v{S}, v{S}, v{A0}")
        allreduce(S)
        a(f"v_mul_f32 v{M}, 0x{f32bits(1.0/640):08x}, v{S}")
        a(f"v_mov_b32 v{A0}, 0")
        a(f"v_mov_b32 v{A1}, 0")
        for j in range(0, 20, 2):
            a(f"v_sub_f32 v{D0}, v{X+j}, v{M}")
            a(f"v_sub_f32 v{D1}, v{X+j+1}, v{M}")
            a(f"v_fmac_f32 v{A0}, v{D0}, v{D0}")
            a(f"v_fmac_f32 v{A1}, v{D1}, v{D1}")
        a(f"v_add_f32 v{A0}, v{A0}, v{A1}")
        allreduce(A0)
        a(f"v_mul_f32 v{A0}, 0x{f32bits(1.0/640):08x}, v{A0}")
        rne(M); rne(A0)
        a(f"v_add_f32 v{A0}, 0x{f32bits(1e-5):08x}, v{A0}")
        rne(A0)
        a(f"v_sqrt_f32 v{A0}, v{A0}")
        a("s_nop 0")
        rne(A0)
        a(f"v_rcp_f32 v{R}, v{A0}")
        a("s_nop 0")
        for j in range(10):
            a(f"v_sub_f32 v{D0}, v{X+2*j}, v{M}")
            a(f"v_sub_f32 v{D1}, v{X+2*j+1}, v{M}")
            a(f"v_cvt_pk_bf16_f32 v{D1}, v{D0}, v{D1}")
            a(f"v_lshlrev_b32 v{D0}, 16, v{D1}")
            a(f"v_and_b32 v{D1}, 0xffff0000, v{D1}")
            a(f"v_mul_f32 v{D0}, v{D0}, v{R}")
            a(f"v_mul_f32 v{D1}, v{D1}, v{R}")
            a(f"v_cvt_pk_bf16_f32 v{P+j}, v{D0}, v{D1}")
            a(f"v_lshlrev_b32 v{X+2*j}, 16, v{P+j}")
            a(f"v_and_b32 v{X+2*j+1}, 0xffff0000, v{P+j}")
        a(f"s_mov_b32 s23, {ws_off}")
        for j in range(5):
            a(f"buffer_store_dwordx2 v[{P+2*j}:{P+2*j+1}], v3, s[16:19], s23 offen offset:{256*j}")
        a("s_nop 1")
    ln(WS_XN)
    a("s_waitcnt vmcnt(0)")
    ln(WS_Y)
    a("s_endpgm")
    a.label("K0_RELAYOUT")
    a(f"""
    s_sub_u32 s20, s2, 256           ; s = wg-256 (0..135), t0 = w*5
    s_mul_i32 s21, s3, 5
    s_cmp_lt_u32 s20, 40
    s_cselect_b32 s12, s8, s10
    s_cselect_b32 s13, s9, s11
    s_cselect_b32 s14, {640*1280}, {1536*1280}
    s_cselect_b32 s22, 0, 40
    s_and_b32 s13, s13, 0xffff
    s_mov_b32 s15, 0x20000
    s_sub_u32 s22, s20, s22          ; local s
    s_mul_i32 s22, s22, {16*1280}
    s_lshl_b32 s23, s21, 6           ; t0*64 bytes
    s_add_u32 s22, s22, s23
    v_lshrrev_b32 v3, 5, v2          ; h
    v_and_b32 v4, 31, v2             ; n
    s_movk_i32 s24, {8*1280}
    v_mul_lo_u32 v3, v3, s24
    v_lshl_add_u32 v3, v4, 1, v3
    v_add_u32 v3, s22, v3
    """)
    for j in range(8):
        a(f"s_movk_i32 s{24+j}, {1280*j}")
    for tt in range(5):
        for j in range(8):
            a(f"buffer_load_ushort v{10+8*tt+j}, v3, s[12:15], s{24+j} offen offset:{64*tt}")
    a(f"""
    s_mul_i32 s22, s20, 20
    s_add_u32 s22, s22, s21
    s_lshl_b32 s22, s22, 10
    s_add_u32 s22, s22, {WS_WF}
    v_lshlrev_b32 v5, 4, v2
    v_add_u32 v6, 4096, v5
    """)
    for tt in range(5):
        a(f"s_waitcnt vmcnt({8*(4-tt)+tt})")
        for d in range(4):
            a(f"v_lshl_or_b32 v{52+4*(tt%3)+d}, v{10+8*tt+2*d+1}, 16, v{10+8*tt+2*d}")
        r = 52+4*(tt%3)
        a(f"buffer_store_dwordx4 v[{r}:{r+3}], v5, s[16:19], s22 offen offset:{1024*tt}" if tt < 4 else
          f"buffer_store_dwordx4 v[{r}:{r+3}], v6, s[16:19], s22 offen")
    a.label("K0_END")
    a("s_endpgm")
    return a.text(), kernel_desc(name, 64, 40), f"; @launch kernel={name} grid=(392,1,1) block=(256,1,1) lds=0"
```

```python
from asmlib import *
import math

LOG2E = 1.4426950408889634
QSCALE = (20 ** -0.5) * LOG2E
GC0 = -2.0 * math.sqrt(2.0/math.pi) * LOG2E
GC1 = GC0 * 0.044715

NKS = 10
LDS_B = 98304
K1_LDS = 98304 + 3*16384

def gen_k1():
    a = Asm()
    name = "k1_gemm_kernel"
    a.lines.append(kernel_header(name))
    vDA = [4,5,6,7]; vDB = [8,9]
    vA = [10,11,12,13]; vA2 = [14,15,16,17]; vB = [18,19]
    FR = [20, 36]
    ACC = 64
    def acc(mi, ni): return ACC + (mi*2+ni)*16
    a(f"""
    s_cmp_ge_u32 s2, 216
    s_cbranch_scc1 K1_END
    s_load_dwordx2 s[4:5], s[0:1], {KA_WQKV}
    s_load_dwordx2 s[6:7], s[0:1], {KA_WS}
    s_load_dwordx2 s[8:9], s[0:1], {KA_W1}
    s_load_dwordx2 s[10:11], s[0:1], {KA_B1}
    v_lshrrev_b32 v2, 6, v0
    v_and_b32 v1, 63, v0
    s_and_b32 s34, s2, 7             ; mt
    s_lshr_b32 s35, s2, 3            ; nt
    v_readfirstlane_b32 s3, v2
    s_lshr_b32 s36, s3, 1            ; wm
    s_and_b32 s37, s3, 1             ; wn
    s_waitcnt lgkmcnt(0)
    s_mov_b32 s20, s6
    s_and_b32 s21, s7, 0xffff
    s_mov_b32 s22, {WS_END}
    s_mov_b32 s23, 0x20000
    s_cmp_lt_u32 s35, 15
    s_cselect_b32 s38, {WS_XN}, {WS_Y}
    s_mul_i32 s39, s34, {256*1280}
    s_add_u32 s38, s38, s39
    s_add_u32 s12, s6, s38
    s_addc_u32 s13, s7, 0
    s_and_b32 s13, s13, 0xffff
    s_mov_b32 s14, {256*1280}
    s_mov_b32 s15, 0x20000
    ; SRD_B s[16:19]
    s_cmp_lt_u32 s35, 15
    s_cselect_b32 s16, s4, s8
    s_cselect_b32 s17, s5, s9
    s_cselect_b32 s28, 3840, 3072
    s_cselect_b32 s38, 0, 15
    s_cselect_b32 s18, {640*3840}, {640*3072}
    s_sub_u32 s38, s35, s38
    s_lshl_b32 s39, s38, 8
    s_add_u32 s16, s16, s39
    s_addc_u32 s17, s17, 0
    s_and_b32 s17, s17, 0xffff
    s_sub_u32 s18, s18, s39
    s_mov_b32 s19, 0x20000
    s_lshl_b32 s31, s28, 6           ; 64*ldb
    s_lshl_b32 s32, s3, 12           ; w*4096
    s_lshl_b32 s33, s3, 11
    s_add_u32 s33, s33, {LDS_B}
    """)
    a(f"""
    v_lshrrev_b32 v3, 5, v1          ; h
    s_cmp_lt_u32 s35, 15
    s_cbranch_scc1 K1_NOBIAS
    s_mov_b32 s24, s10
    s_and_b32 s25, s11, 0xffff
    s_mov_b32 s26, {1536*2}
    s_mov_b32 s27, 0x20000
    s_lshl_b32 s39, s38, 8           ; (nt-15)*128*2
    s_lshl_b32 s40, s37, 7           ; wn*64*2
    s_add_u32 s39, s39, s40
    v_lshlrev_b32 v52, 3, v3         ; h*8
    """)
    for ni in range(2):
        for g in range(4):
            a(f"buffer_load_dwordx2 v[{FR[0]+2*(ni*4+g)}:{FR[0]+2*(ni*4+g)+1}], v52, s[24:27], s39 offen offset:{ni*64+g*16}")
    a.label("K1_NOBIAS")
    a(f"""
    v_lshrrev_b32 v52, 3, v1         ; l/8
    v_and_b32 v53, 7, v1             ; c'
    v_lshrrev_b32 v54, 4, v1         ; l/16
    s_lshl_b32 s39, s3, 5            ; w*32 rows
    s_movk_i32 s40, 1280
    """)
    for i in range(4):
        a(f"""
        v_add_u32 v55, s39, v52
        v_add_u32 v55, {i*8}, v55
        v_mul_lo_u32 v55, v55, s40
        v_add_u32 v56, {(i%2)*4}, v54
        v_and_b32 v56, 7, v56
        v_xor_b32 v56, v53, v56
        v_lshl_add_u32 v{vDA[i]}, v56, 4, v55
        """)
        if i: a(f"v_subrev_u32 v{vDA[i]}, {i*1024}, v{vDA[i]}")
    a(f"""
    v_and_b32 v53, 15, v1            ; c' (0..15)
    v_lshlrev_b32 v56, 2, v54        ; (l/16)<<2
    v_xor_b32 v56, v53, v56          ; c
    s_lshl_b32 s39, s3, 3            ; w*8 krows
    """)
    for i in range(2):
        a(f"""
        v_add_u32 v55, s39, v54
        v_add_u32 v55, {i*4}, v55
        v_mul_lo_u32 v55, v55, s28
        v_lshl_add_u32 v{vDB[i]}, v56, 4, v55
        """)
        if i: a(f"v_subrev_u32 v{vDB[i]}, {i*1024}, v{vDB[i]}")
    a("s_mov_b32 s29, 0")
    a("s_mov_b32 s30, 0")
    def dma(ks):
        buf = ks % 3
        a(f"s_add_u32 m0, s32, {buf*32768}")
        a("s_nop 0")
        for i in range(4):
            a(f"buffer_load_dwordx4 v{vDA[i]}, s[12:15], s29 offen offset:{i*1024} lds")
        a(f"s_add_u32 m0, s33, {buf*16384}")
        a("s_add_u32 s29, s29, 128")
        for i in range(2):
            a(f"buffer_load_dwordx4 v{vDB[i]}, s[16:19], s30 offen offset:{i*1024} lds")
        a("s_add_u32 s30, s30, s31")
    dma(0); dma(1); dma(2)
    a(f"""
    v_and_b32 v52, 31, v1            ; r
    s_lshl_b32 s39, s36, 6           ; wm*64
    v_add_u32 v53, s39, v52
    v_lshlrev_b32 v53, 7, v53        ; row*128
    v_lshrrev_b32 v54, 1, v52
    v_and_b32 v54, 7, v54            ; f
    """)
    for s in range(4):
        a(f"""
        v_add_u32 v55, {2*s}, v3
        v_xor_b32 v55, v55, v54
        v_lshl_add_u32 v{vA[s]}, v55, 4, v53
        v_add_u32 v{vA2[s]}, 0x10000, v{vA[s]}
        """)
    a(f"""
    v_lshrrev_b32 v52, 4, v1         ; gq
    v_and_b32 v53, 15, v1            ; i
    v_lshrrev_b32 v54, 2, v53        ; i/4
    v_lshrrev_b32 v55, 1, v52        ; gq/2
    v_lshl_add_u32 v55, v55, 3, v54
    v_lshlrev_b32 v55, 8, v55        ; *256
    v_and_b32 v56, 1, v53
    v_lshl_add_u32 v55, v56, 3, v55  ; + (i%2)*8
    v_add_u32 v55, {LDS_B}, v55
    v_and_b32 v56, 1, v52            ; gq%2
    v_lshlrev_b32 v56, 1, v56
    v_bfe_u32 v57, v53, 1, 1         ; (i%4)/2
    v_add_u32 v56, v56, v57
    s_lshl_b32 s39, s37, 3           ; wn*8
    v_add_u32 v56, s39, v56
    v_lshlrev_b32 v54, 2, v54        ; (i/4)<<2
    """)
    for ni in range(2):
        a(f"""
        v_add_u32 v57, {ni*4}, v56
        v_xor_b32 v57, v57, v54
        v_lshl_add_u32 v{vB[ni]}, v57, 4, v55
        """)
    a(f"""
    s_cmp_lt_u32 s35, 15
    s_cbranch_scc1 K1_ZERO
    s_waitcnt vmcnt(18)
    """)
    for ni in range(2):
        for g in range(4):
            for d in range(2):
                src = FR[0] + 2*(ni*4+g) + d
                for mi in range(2):
                    a(f"v_lshlrev_b32 v{acc(mi,ni)+4*g+2*d}, 16, v{src}")
                    a(f"v_and_b32 v{acc(mi,ni)+4*g+2*d+1}, 0xffff0000, v{src}")
    a("s_branch K1_INITDONE")
    a.label("K1_ZERO")
    for r in range(64):
        a(f"v_mov_b32 v{ACC+r}, 0")
    a.label("K1_INITDONE")
    a(f"""
    s_cmp_lt_u32 s35, 10
    s_cbranch_scc1 K1_MAIN_N
    s_cmp_ge_u32 s35, 15
    s_cbranch_scc1 K1_MAIN_N
    """)
    def reads(ks, s, p):
        buf = ks % 3
        va = vA[s] if buf < 2 else vA2[s]
        offA = buf*32768 if buf < 2 else 0
        F = FR[p]
        a(f"ds_read_b128 v[{F}:{F+3}], v{va} offset:{offA}")
        a(f"ds_read_b128 v[{F+4}:{F+7}], v{va} offset:{offA+4096}")
        for ni in range(2):
            for t in range(2):
                a(f"ds_read_b64_tr_b16 v[{F+8+4*ni+2*t}:{F+9+4*ni+2*t}], v{vB[ni]} offset:{buf*16384+s*4096+t*1024}")
    def mfmas(p, vmode):
        F = FR[p]
        for mi in range(2):
            for ni in range(2):
                A = f"v[{F+4*mi}:{F+4*mi+3}]"; B = f"v[{F+8+4*ni}:{F+8+4*ni+3}]"
                c = acc(mi, ni)
                if vmode: a(f"v_mfma_f32_32x32x16_bf16 v[{c}:{c+15}], {A}, {B}, v[{c}:{c+15}]")
                else:     a(f"v_mfma_f32_32x32x16_bf16 v[{c}:{c+15}], {B}, {A}, v[{c}:{c+15}]")
    def mainloop(vmode):
        a("s_waitcnt vmcnt(12)")
        a("s_barrier")
        reads(0, 0, 0)
        step = 0
        for ks in range(NKS):
            for s in range(4):
                p = step % 2
                if s < 3:
                    reads(ks, s+1, 1-p)
                    a("s_waitcnt lgkmcnt(6)")
                else:
                    if ks + 1 < NKS:
                        a(f"s_waitcnt vmcnt({6 if ks+2 < NKS else 0}) lgkmcnt(0)")
                        a("s_barrier")
                        if ks + 3 < NKS: dma(ks+3)
                        reads(ks+1, 0, 1-p)
                    else:
                        a("s_waitcnt lgkmcnt(0)")
                mfmas(p, vmode)
                step += 1
        a("s_nop 15")
    a.label("K1_MAIN_V")
    mainloop(True)
    a(f"""
    v_and_b32 v52, 31, v1
    s_sub_u32 s39, s35, 10
    s_lshl_b32 s39, s39, 7           ; (nt-10)*128
    s_lshl_b32 s40, s37, 6
    s_add_u32 s39, s39, s40          ; + wn*64
    v_add_u32 v52, s39, v52
    s_lshl_b32 s40, s34, 3
    s_lshl_b32 s41, s36, 1
    s_add_u32 s40, s40, s41
    s_mul_i32 s40, s40, 2560
    s_add_u32 s40, s40, {WS_KV + 1280}
    s_add_u32 s41, s40, 2560         ; mi=1
    s_movk_i32 s42, 3277
    s_mov_b32 s43, {163840}
    v_mul_u32_u24 v53, 20, v3        ; h*20
    """)
    for ni in range(2):
        a(f"""
        v_add_u32 v54, {ni*32}, v52
        v_mul_u32_u24 v55, s42, v54
        v_lshrrev_b32 v55, 16, v55       ; head
        v_mul_u32_u24 v56, 20, v55
        v_sub_u32 v56, v54, v56          ; d
        v_add_u32 v56, v56, v53          ; h*20+d
        v_mul_lo_u32 v55, v55, s43
        v_lshl_add_u32 v{58+ni}, v56, 4, v55
        """)
    t = FR[0]
    k = 0
    for mi in range(2):
        for ni in range(2):
            c = acc(mi, ni)
            for pv in range(2):
                r = t + 4*(k % 8); k += 1
                for d in range(4):
                    a(f"v_cvt_pk_bf16_f32 v{r+d}, v{c+8*pv+2*d}, v{c+8*pv+2*d+1}")
                a(f"buffer_store_dwordx4 v[{r}:{r+3}], v{58+ni}, s[20:23], s{40+mi} offen offset:{pv*640}")
    a("s_endpgm")
    a.label("K1_MAIN_N")
    mainloop(False)
    a(f"""
    s_cmp_ge_u32 s35, 15
    s_cbranch_scc1 K1_EPI_H
    """)
    a(f"""
    s_cmp_lt_u32 s35, 5
    s_cselect_b32 s39, 0, 5
    s_cselect_b32 s43, {81920}, {163840}
    s_cselect_b32 s44, 1280, 2560
    s_cselect_b32 s45, {WS_QF}, {WS_KV}
    s_cselect_b32 s46, 0x{f32bits(QSCALE):08x}, 0x3f800000
    s_sub_u32 s39, s35, s39
    s_lshl_b32 s39, s39, 7
    s_lshl_b32 s40, s37, 6
    s_add_u32 s39, s39, s40
    v_lshlrev_b32 v52, 2, v3
    v_add_u32 v52, s39, v52          ; + 4h
    s_lshl_b32 s40, s34, 3
    s_lshl_b32 s41, s36, 1
    s_add_u32 s40, s40, s41
    s_mul_i32 s40, s40, s44
    s_add_u32 s40, s40, s45
    s_add_u32 s41, s40, s44          ; mi=1
    s_movk_i32 s42, 3277
    v_and_b32 v53, 31, v1            ; key
    v_lshlrev_b32 v54, 4, v53        ; key*16
    v_lshlrev_b32 v53, 3, v53        ; key*8
    v_add_u32 v53, 1024, v53         ; 1024 + key*8
    """)
    k = 0
    for ni in range(2):
        for g in range(4):
            a(f"""
            v_add_u32 v55, {ni*32+8*g}, v52      ; n'
            v_mul_u32_u24 v56, s42, v55
            v_lshrrev_b32 v56, 16, v56           ; head
            v_mul_u32_u24 v57, 20, v56
            v_sub_u32 v57, v55, v57              ; d
            v_lshrrev_b32 v58, 3, v57            ; d/8
            v_lshl_add_u32 v58, v58, 9, v54      ; (d/8)*512 + key*16
            v_and_b32 v59, 7, v57
            v_lshl_add_u32 v58, v59, 1, v58      ; + (d%8)*2
            v_cmp_gt_u32 vcc, 16, v57
            v_mul_lo_u32 v56, v56, s43
            s_nop 0
            v_cndmask_b32 v58, v53, v58, vcc
            v_add_u32 v58, v58, v56
            """)
            for mi in range(2):
                c = acc(mi, ni) + 4*g
                r = FR[0] + 2*(k % 16); k += 1
                for j in range(4):
                    a(f"v_mul_f32 v{c+j}, s46, v{c+j}")
                a(f"v_cvt_pk_bf16_f32 v{r}, v{c}, v{c+1}")
                a(f"v_cvt_pk_bf16_f32 v{r+1}, v{c+2}, v{c+3}")
                a(f"buffer_store_dwordx2 v[{r}:{r+1}], v58, s[20:23], s{40+mi} offen")
    a("s_endpgm")
    a.label("K1_EPI_H")
    a(f"""
    v_and_b32 v52, 31, v1
    v_lshlrev_b32 v52, 4, v52
    v_lshl_add_u32 v52, v3, 3, v52   ; key*16 + h*8
    s_lshl_b32 s40, s34, 3
    s_lshl_b32 s41, s36, 1
    s_add_u32 s40, s40, s41
    s_mul_i32 s40, s40, {136*1024}
    s_sub_u32 s39, s35, 15
    s_lshl_b32 s39, s39, 3
    s_lshl_b32 s41, s37, 2
    s_add_u32 s39, s39, s41
    s_add_u32 s39, s39, 40
    s_lshl_b32 s39, s39, 10
    s_add_u32 s40, s40, s39
    s_add_u32 s40, s40, {WS_AF}
    s_add_u32 s41, s40, {136*1024}
    v_mov_b32 v53, 0x{f32bits(GC1):08x}
    """)
    k = 0
    for mi in range(2):
        for ni in range(2):
            for g in range(4):
                c = acc(mi, ni) + 4*g
                T = 54
                for j in range(4): a(f"v_mul_f32 v{T+j}, v{c+j}, v{c+j}")
                for j in range(4): a(f"v_fmaak_f32 v{T+j}, v{T+j}, v53, 0x{f32bits(GC0):08x}")
                for j in range(4): a(f"v_mul_f32 v{T+j}, v{T+j}, v{c+j}")
                for j in range(4): a(f"v_exp_f32 v{T+j}, v{T+j}")
                for j in range(4): a(f"v_add_f32 v{T+j}, 1.0, v{T+j}")
                for j in range(4): a(f"v_rcp_f32 v{T+j}, v{T+j}")
                for j in range(4): a(f"v_mul_f32 v{T+j}, v{T+j}, v{c+j}")
                r = FR[0] + 2*(k % 16); k += 1
                a(f"v_cvt_pk_bf16_f32 v{r}, v{T}, v{T+1}")
                a(f"v_cvt_pk_bf16_f32 v{r+1}, v{T+2}, v{T+3}")
                a(f"buffer_store_dwordx2 v[{r}:{r+1}], v52, s[20:23], s{40+mi} offen offset:{(g%2)*512 + (ni*2+g//2)*1024}")
    a.label("K1_END")
    a("s_endpgm")
    return a.text(), kernel_desc(name, 128, 56), f"; @launch kernel={name} grid=(216,1,1) block=(512,1,1) lds={K1_LDS}"
```

```python
from asmlib import *

K2_RING = 40960
K2_FLAG = 40960
K2_LDS = 40960 + 64

def gen_k2():
    a = Asm()
    name = "k2_attn_kernel"
    a.lines.append(kernel_header(name))
    Q = 4; QH = 8; NC = 16; O = 32; S = [48, 64]; P = 80; KL = 88; KH = 92; V = [96, 104]
    vKa = 112; vKHa = 113; vVa = 114; vDma = 115; T = 116
    a(f"""
    s_cmp_ge_u32 s2, 256
    s_cbranch_scc1 K2_END
    s_load_dwordx2 s[6:7], s[0:1], {KA_WS}
    v_lshrrev_b32 v2, 6, v0
    v_and_b32 v1, 63, v0
    s_and_b32 s34, s2, 7
    s_lshl_b32 s34, s34, 2
    s_bfe_u32 s35, s2, 0x20003       ; (wg>>3)&3
    s_add_u32 s34, s34, s35          ; head
    s_lshr_b32 s35, s2, 5            ; qb
    v_readfirstlane_b32 s3, v2       ; w
    v_lshrrev_b32 v3, 5, v1          ; h
    v_and_b32 v2, 31, v1
    s_lshl_b32 s35, s35, 3
    s_add_u32 s35, s35, s3           ; qtile
    s_mov_b32 s40, 0x000fffff
    s_mov_b32 s41, 0x000fffff
    s_mov_b32 s42, 0
    s_mov_b32 s43, -1
    s_mov_b32 s44, -1
    s_mov_b32 s45, 0
    s_mov_b32 s46, 0
    s_waitcnt lgkmcnt(0)
    s_mov_b32 s20, s6
    s_and_b32 s21, s7, 0xffff
    s_mov_b32 s22, {WS_END}
    s_mov_b32 s23, 0x20000
    s_mul_i32 s36, s34, 81920
    s_mul_i32 s37, s35, 1280
    s_add_u32 s36, s36, s37
    s_add_u32 s36, s36, {WS_QF}
    s_mul_i32 s37, s34, 163840
    s_add_u32 s37, s37, {WS_KV}
    v_lshlrev_b32 v{vKa}, 4, v1                 ; lane*16
    v_lshlrev_b32 v{vKHa}, 3, v2
    v_add_u32 v{vKHa}, 1024, v{vKHa}            ; 1024 + (l%32)*8
    v_mul_u32_u24 v{vVa}, 20, v3
    v_add_u32 v{vVa}, v{vVa}, v2
    v_lshlrev_b32 v{vVa}, 4, v{vVa}
    v_add_u32 v{vVa}, 1280, v{vVa}              ; 1280 + (h*20+d)*16
    s_lshl_b32 s38, s3, 10                      ; w*1024
    v_add_u32 v{vDma}, s38, v{vKa}
    v_mov_b32 v{QH}, 0
    v_mov_b32 v{QH+1}, 0
    buffer_load_dwordx4 v[{Q}:{Q+3}], v{vKa}, s[20:23], s36 offen
    s_mov_b64 exec, s[44:45]
    buffer_load_dwordx2 v[{QH}:{QH+1}], v{vKHa}, s[20:23], s36 offen
    s_mov_b64 exec, -1
    v_mov_b32 v{T}, {K2_FLAG}
    v_mov_b32 v{T+1}, 0
    ds_write_b32 v{T}, v{T+1}
    """)
    for b in range(2):
        for r in range(8):
            a(f"v_mov_b32 v{V[b]+r}, 0x3f803f80")
    a.label("K2_RESTART")
    a("s_mov_b32 s39, s37")
    def dma(slot):
        a(f"s_add_u32 m0, s38, {slot*8192}")
        a("s_nop 0")
        a(f"buffer_load_dwordx4 v{vDma}, s[20:23], s39 offen lds")
        a("s_add_u32 s39, s39, 8192")
    dma(0); dma(1); dma(2)
    for r in range(16):
        a(f"v_mov_b32 v{O+r}, 0")
    a("s_waitcnt vmcnt(2) lgkmcnt(0)")
    a("s_barrier")
    dma(3)
    def readK(tt):
        off = (tt % 16) * 2560
        a(f"ds_read_b128 v[{KL}:{KL+3}], v{vKa} offset:{off}")
        a(f"ds_read_b64 v[{KH}:{KH+1}], v{vKHa} offset:{off}")
    def readV(tt):
        off = (tt % 16) * 2560
        b = V[tt % 2]
        a("s_mov_b64 exec, s[40:41]")
        a(f"ds_read_b128 v[{b}:{b+3}], v{vVa} offset:{off}")
        a(f"ds_read_b128 v[{b+4}:{b+7}], v{vVa} offset:{off+640}")
        a("s_mov_b64 exec, -1")
    def qk(sb, c):
        a(f"v_mfma_f32_32x32x16_bf16 v[{sb}:{sb+15}], v[{KL}:{KL+3}], v[{Q}:{Q+3}], {c}")
        a(f"v_mfma_f32_32x32x8_bf16 v[{sb}:{sb+15}], v[{KH}:{KH+1}], v[{QH}:{QH+1}], v[{sb}:{sb+15}]")
    def maxtree(sb, dst, first):
        if first:
            a(f"v_max3_f32 v{dst}, v{sb}, v{sb+1}, v{sb+2}")
            a(f"v_max_f32 v{dst}, v{dst}, v{sb+3}")
            rng = range(4, 16, 2)
        else:
            rng = range(0, 16, 2)
        for i in rng:
            a(f"v_max3_f32 v{dst}, v{dst}, v{sb+i}, v{sb+i+1}")
    def crosshalf_to_nc(m):
        a(f"""
        v_mov_b32 v{T+2}, v{m}
        v_mov_b32 v{T+3}, v{m}
        s_nop 1
        v_permlane32_swap_b32 v{T+2}, v{T+3}
        s_nop 1
        v_max_f32 v{T+2}, v{T+2}, v{T+3}
        """)
        for r in range(16):
            a(f"v_sub_f32 v{NC+r}, 0, v{T+2}")
    readK(0)
    a("s_waitcnt lgkmcnt(0)")
    a(f"""
    s_cmp_lg_u32 s46, 0
    s_cbranch_scc1 K2_HAVE_NC
    """)
    qk(S[0], "0")
    a("s_nop 15")
    maxtree(S[0], T+4, True)
    crosshalf_to_nc(T+4)
    a("s_nop 1")
    a.label("K2_HAVE_NC")
    qk(S[0], f"v[{NC}:{NC+15}]")
    readK(1)
    readV(0)
    a("s_mov_b32 s47, 0")
    a.label("K2_LOOP")
    sync_at = {1:4, 4:0, 7:1, 10:2, 14:3}
    for tt in range(16):
        sc = S[tt % 2]; sn = S[(tt+1) % 2]; vb = V[tt % 2]
        a("s_waitcnt lgkmcnt(2)")
        qk(sn, f"v[{NC}:{NC+15}]")
        if tt in sync_at:
            a("s_waitcnt vmcnt(2) lgkmcnt(0)")
            a("s_barrier")
            dma(sync_at[tt])
        readK(tt+2)
        readV(tt+1)
        for half in range(2):
            for i in range(8):
                r = sc + 8*half + i
                a(f"v_exp_f32 v{r}, v{r}")
                if i % 2 == 1 and i >= 3:
                    j = (i-3)//2
                    a(f"v_cvt_pk_bf16_f32 v{P+4*half+j}, v{sc+8*half+2*j}, v{sc+8*half+2*j+1}")
            if half == 0:
                a(f"v_exp_f32 v{sc+8}, v{sc+8}")
                a(f"v_cvt_pk_bf16_f32 v{P+3}, v{sc+6}, v{sc+7}")
                a(f"v_exp_f32 v{sc+9}, v{sc+9}")
                a(f"v_exp_f32 v{sc+10}, v{sc+10}")
                a("s_waitcnt lgkmcnt(4)")
                a(f"v_mfma_f32_32x32x16_bf16 v[{O}:{O+15}], v[{vb}:{vb+3}], v[{P}:{P+3}], v[{O}:{O+15}]")
                for i in range(3, 8):
                    r = sc + 8 + i
                    a(f"v_exp_f32 v{r}, v{r}")
                    if i % 2 == 1:
                        j = (i-3)//2
                        a(f"v_cvt_pk_bf16_f32 v{P+4+j}, v{sc+8+2*j}, v{sc+8+2*j+1}")
                a("s_nop 0")
                a(f"v_cvt_pk_bf16_f32 v{P+7}, v{sc+14}, v{sc+15}")
                a("s_nop 1")
                a(f"v_mfma_f32_32x32x16_bf16 v[{O}:{O+15}], v[{vb+4}:{vb+7}], v[{P+4}:{P+7}], v[{O}:{O+15}]")
                break
    a(f"""
    s_add_u32 s47, s47, 1
    s_cmp_lt_u32 s47, 4
    s_cbranch_scc1 K2_LOOP
    s_nop 15
    v_cndmask_b32 v{T+4}, v{O+12}, v{O+8}, s[42:43]     ; l
    s_cmp_lg_u32 s46, 0
    s_cbranch_scc1 K2_FINISH
    v_mov_b32 v{T+5}, 0x5d800000
    v_cmp_nlt_f32 vcc, v{T+4}, v{T+5}
    v_mov_b32 v{T}, {K2_FLAG}
    v_mov_b32 v{T+1}, 1
    s_and_saveexec_b64 s[48:49], vcc
    s_cbranch_execz K2_NOBAD
    ds_write_b32 v{T}, v{T+1}
    K2_NOBAD:
    s_mov_b64 exec, -1
    s_waitcnt vmcnt(0) lgkmcnt(0)
    s_barrier
    ds_read_b32 v{T+1}, v{T}
    s_waitcnt lgkmcnt(0)
    v_readfirstlane_b32 s48, v{T+1}
    s_cmp_eq_u32 s48, 0
    s_cbranch_scc1 K2_FINISH
    s_mov_b32 s46, 1
    s_mov_b32 s39, s37
    s_mov_b32 s47, 0
    v_mov_b32 v{T+4}, 0xff800000
    K2_MAXLOOP:
    buffer_load_dwordx4 v[{KL}:{KL+3}], v{vKa}, s[20:23], s39 offen
    buffer_load_dwordx2 v[{KH}:{KH+1}], v{vKHa}, s[20:23], s39 offen
    s_waitcnt vmcnt(0)
    """)
    qk(S[0], "0")
    a("s_nop 15")
    maxtree(S[0], T+4, False)
    a(f"""
    s_add_u32 s39, s39, 2560
    s_add_u32 s47, s47, 1
    s_cmp_lt_u32 s47, 64
    s_cbranch_scc1 K2_MAXLOOP
    """)
    crosshalf_to_nc(T+4)
    a("s_barrier")
    a("s_branch K2_RESTART")
    a.label("K2_FINISH")
    a(f"""
    v_rcp_f32 v{T+4}, v{T+4}
    s_mul_i32 s48, s34, 20
    v_lshlrev_b32 v{T+5}, 2, v3
    v_add_u32 v{T+5}, s48, v{T+5}
    s_mul_i32 s48, s35, {136*1024}
    s_add_u32 s48, s48, {WS_AF}
    v_lshlrev_b32 v{T+6}, 4, v2                ; q*16
    """)
    for g in range(3):
        for j in range(4):
            a(f"v_mul_f32 v{O+4*g+j}, v{O+4*g+j}, v{T+4}")
        a(f"v_cvt_pk_bf16_f32 v{P+2*g}, v{O+4*g}, v{O+4*g+1}")
        a(f"v_cvt_pk_bf16_f32 v{P+2*g+1}, v{O+4*g+2}, v{O+4*g+3}")
        a(f"""
        v_add_u32 v{T+7}, {8*g}, v{T+5}            ; k
        v_lshrrev_b32 v{T+8}, 3, v{T+7}            ; k>>3 = s*2+hh
        v_lshl_add_u32 v{T+8}, v{T+8}, 9, v{T+6}   ; *512 + q*16
        v_and_b32 v{T+7}, 7, v{T+7}
        v_lshl_add_u32 v{T+8}, v{T+7}, 1, v{T+8}
        """)
        if g == 2: a("s_mov_b64 exec, s[44:45]")
        a(f"buffer_store_dwordx2 v[{P+2*g}:{P+2*g+1}], v{T+8}, s[20:23], s48 offen")
    a.label("K2_END")
    a("s_endpgm")
    return a.text(), kernel_desc(name, 128, 56), f"; @launch kernel={name} grid=(256,1,1) block=(512,1,1) lds={K2_LDS}"
```

```python
from asmlib import *

K3_LDS = 81920
def gen_k3():
    a = Asm()
    name = "k3_out_kernel"
    a.lines.append(kernel_header(name))
    NS = 34; DEPTH = 4
    ACC = 16
    FB = 96
    a(f"""
    s_cmp_ge_u32 s2, 256
    s_cbranch_scc1 K3_END
    s_load_dwordx2 s[6:7], s[0:1], {KA_WS}
    s_load_dwordx2 s[8:9], s[0:1], {KA_X}
    s_load_dwordx2 s[10:11], s[0:1], {KA_B2}
    s_load_dwordx2 s[4:5], s[0:1], {KA_OUT}
    v_lshrrev_b32 v2, 6, v0
    v_and_b32 v1, 63, v0
    s_and_b32 s34, s2, 63            ; mt32
    s_lshr_b32 s35, s2, 6            ; ng
    v_readfirstlane_b32 s3, v2
    v_lshlrev_b32 v4, 4, v1          ; lane*16
    v_add_u32 v5, 4096, v4
    s_waitcnt lgkmcnt(0)
    s_mov_b32 s20, s6
    s_and_b32 s21, s7, 0xffff
    s_mov_b32 s22, {WS_END}
    s_mov_b32 s23, 0x20000
    s_mul_i32 s36, s3, {NS}          ; first s
    s_mul_i32 s37, s34, {136*1024}
    s_lshl_b32 s38, s36, 10
    s_add_u32 s37, s37, s38
    s_add_u32 s37, s37, {WS_AF}      ; A soffset
    s_mul_i32 s38, s36, 20
    s_mul_i32 s39, s35, 5
    s_add_u32 s38, s38, s39
    s_lshl_b32 s38, s38, 10
    s_add_u32 s38, s38, {WS_WF}      ; B soffset
    """)
    def loads(i):
        F = FB + (i % DEPTH)*24
        a(f"buffer_load_dwordx4 v[{F}:{F+3}], v4, s[20:23], s37 offen")
        for j in range(4):
            a(f"buffer_load_dwordx4 v[{F+4+4*j}:{F+7+4*j}], v4, s[20:23], s38 offen offset:{1024*j}")
        a(f"buffer_load_dwordx4 v[{F+20}:{F+23}], v5, s[20:23], s38 offen")
        a("s_add_u32 s37, s37, 1024")
        a("s_add_u32 s38, s38, 20480")
    for i in range(DEPTH-1): loads(i)
    for r in range(80): a(f"v_mov_b32 v{ACC+r}, 0")
    for i in range(NS):
        if i + DEPTH - 1 < NS:
            loads(i + DEPTH - 1)
        rem = min(DEPTH-1, NS-1-i)
        a(f"s_waitcnt vmcnt({6*rem})")
        F = FB + (i % DEPTH)*24
        for j in range(5):
            c = ACC + 16*j
            a(f"v_mfma_f32_32x32x16_bf16 v[{c}:{c+15}], v[{F+4+4*j}:{F+7+4*j}], v[{F}:{F+3}], v[{c}:{c+15}]")
    a(f"""
    s_mov_b32 s12, s8
    s_and_b32 s13, s9, 0xffff
    s_mov_b32 s14, {2048*1280}
    s_mov_b32 s15, 0x20000
    s_mov_b32 s16, s10
    s_and_b32 s17, s11, 0xffff
    s_mov_b32 s18, 1280
    s_mov_b32 s19, 0x20000
    s_mov_b32 s24, s4
    s_and_b32 s25, s5, 0xffff
    s_mov_b32 s26, {2048*1280}
    s_mov_b32 s27, 0x20000
    v_lshrrev_b32 v3, 5, v1          ; h
    v_and_b32 v2, 31, v1
    s_mul_i32 s39, s35, 320
    s_mul_i32 s40, s3, 80            ; 5w*8*2 bytes
    s_add_u32 s39, s39, s40
    v_lshlrev_b32 v6, 3, v3          ; 4h*2
    v_add_u32 v6, s39, v6            ; b2 voff
    s_lshl_b32 s40, s34, 5
    v_add_u32 v7, s40, v2            ; token
    s_movk_i32 s41, 1280
    v_mul_lo_u32 v7, v7, s41
    v_add_u32 v7, v7, v6
    """)
    XB = FB
    for e in range(5):
        a(f"buffer_load_dwordx2 v[{XB+4*e}:{XB+4*e+1}], v7, s[12:15], 0 offen offset:{16*e}")
        a(f"buffer_load_dwordx2 v[{XB+4*e+2}:{XB+4*e+3}], v6, s[16:19], 0 offen offset:{16*e}")
    a(f"""
    s_mul_i32 s40, s3, 20480
    v_add_u32 v8, s40, v4
    s_nop 7
    """)
    for idx in range(20):
        c = ACC + 4*idx
        a(f"ds_write_b128 v8, v[{c}:{c+3}] offset:{1024*idx}")
    a(f"""
    s_mul_i32 s40, s3, 5120
    v_add_u32 v9, s40, v4
    v_add_u32 v10, 0xA000, v9        ; +40960
    s_waitcnt lgkmcnt(0)
    s_barrier
    """)
    RB = ACC
    for e in range(5):
        for ww in range(4):
            base = 9 if ww < 2 else 10
            a(f"ds_read_b128 v[{RB+16*e+4*ww}:{RB+16*e+4*ww+3}], v{base} offset:{(ww%2)*20480 + 1024*e}")
    a("s_waitcnt vmcnt(0)")
    for e in range(5):
        a(f"s_waitcnt lgkmcnt({min(15,4*(4-e))})")
        r = RB + 16*e
        xb = XB + 4*e
        for j in range(4):
            a(f"v_add_f32 v{r+j}, v{r+j}, v{r+4+j}")
            a(f"v_add_f32 v{r+8+j}, v{r+8+j}, v{r+12+j}")
        for j in range(4):
            a(f"v_add_f32 v{r+j}, v{r+j}, v{r+8+j}")
        for d in range(2):
            a(f"v_lshlrev_b32 v{r+4+2*d}, 16, v{xb+d}")
            a(f"v_and_b32 v{r+5+2*d}, 0xffff0000, v{xb+d}")
            a(f"v_lshlrev_b32 v{r+8+2*d}, 16, v{xb+2+d}")
            a(f"v_and_b32 v{r+9+2*d}, 0xffff0000, v{xb+2+d}")
        for j in range(4):
            a(f"v_add_f32 v{r+4+j}, v{r+4+j}, v{r+8+j}")
        for j in range(4):
            a(f"v_add_f32 v{r+j}, v{r+j}, v{r+4+j}")
        a(f"v_cvt_pk_bf16_f32 v{r+12}, v{r}, v{r+1}")
        a(f"v_cvt_pk_bf16_f32 v{r+13}, v{r+2}, v{r+3}")
        a(f"buffer_store_dwordx2 v[{r+12}:{r+13}], v7, s[24:27], 0 offen offset:{16*e}")
    a.label("K3_END")
    a("s_endpgm")
    return a.text(), kernel_desc(name, FB + DEPTH*24, 56), f"; @launch kernel={name} grid=(256,1,1) block=(256,1,1) lds={K3_LDS}"
```

```python
import sys
sys.path.insert(0, "gen")
from asmlib import *
from k1 import gen_k1
from k2 import gen_k2
from k3 import gen_k3

def build(out_path):
    ref = open("parallel_sum__mha_block__mixer_channel_mlp__prompt.s.ref").read().split("\n")
    head = [l for l in ref[:12] if l.startswith("; ") and "@launch" not in l and "Override" not in l and "grid=ceil" not in l]
    ks = [gen_k1(), gen_k2()]
    txt = "\n".join(head) + "\n"
    txt += "\n".join(k[2] for k in ks) + "\n"
    txt += '.amdgcn_target "amdgcn-amd-amdhsa--gfx950"\n.text\n'
    for k in ks: txt += k[0]
    txt += '.section .rodata,"a"\n'
    for k in ks: txt += k[1]
    open(out_path, "w").write(txt)

if __name__ == "__main__":
    build(sys.argv[1] if len(sys.argv) > 1 else "parallel_sum__mha_block__mixer_channel_mlp__prompt.s")
```

```python
class Asm:
    def __init__(self):
        self.lines = []
        self._lbl = 0
    def __call__(self, s):
        import re
        for ln in s.strip("\n").split("\n"):
            t = ln.strip()
            m = re.match(r"s_cselect_b32 (s\d+), (0x[0-9a-fA-F]+|\d+), (0x[0-9a-fA-F]+|\d+)(\s*;.*)?$", t)
            if m and int(m.group(2), 0) > 64 and int(m.group(3), 0) > 64:
                self.lines.append(f"    s_mov_b32 {m.group(1)}, {m.group(3)}")
                self.lines.append(f"    s_cselect_b32 {m.group(1)}, {m.group(2)}, {m.group(1)}")
                continue
            self.lines.append("    " + t if not t.endswith(":") else t)
    def label(self, name):
        self.lines.append(f"{name}:")
    def newlabel(self, base="L"):
        self._lbl += 1
        return f"{base}_{self._lbl}"
    def comment(self, s):
        self.lines.append(f"    ; {s}")
    def text(self):
        return "\n".join(self.lines) + "\n"

def vr(a, n=1):
    return f"v{a}" if n == 1 else f"v[{a}:{a+n-1}]"
def sr(a, n=1):
    return f"s{a}" if n == 1 else f"s[{a}:{a+n-1}]"

def kernel_header(name):
    return f""".globl {name}
.p2align 8
.type {name},@function
{name}:
"""

def kernel_desc(name, vgpr, sgpr=102, accum=None):
    if accum is None:
        accum = (vgpr + 3)//4*4
    return f""".p2align 6
.amdhsa_kernel {name}
  .amdhsa_next_free_vgpr {vgpr}
  .amdhsa_next_free_sgpr {sgpr}
  .amdhsa_accum_offset {accum}
  .amdhsa_group_segment_fixed_size 0
  .amdhsa_kernarg_size 88
  .amdhsa_user_sgpr_count 2
  .amdhsa_user_sgpr_kernarg_segment_ptr 1
  .amdhsa_system_sgpr_workgroup_id_x 1
.end_amdhsa_kernel
"""

KA_X, KA_WQKV, KA_WO, KA_BX, KA_W1, KA_B1, KA_W2, KA_B2, KA_OUT, KA_DBG, KA_WS = [8*i for i in range(11)]

WS_ST = 0
WS_CS = 0x8000
WS_QF = 0x500000
WS_KV = 0x780000
WS_AF = 0xC80000
WS_WF = 0x1500000
WS_MP = 0x1800000
WS_END = 0x1E00000

def f32bits(x):
    import struct
    return struct.unpack("<I", struct.pack("<f", x))[0]

import os
STAMP = bool(int(os.environ.get("STAMP", "0")))
WS_STAMP = 0x2000000
def stamp(a, slot):
    if not STAMP: return
    a(f"s_memtime s[{96}:{97}]")
    if slot == 0: a("s_memrealtime s[98:99]")
    a("s_waitcnt lgkmcnt(0)")
    a(f"s_mov_b32 s{70+slot}, s96")
    if slot == 0: a("s_mov_b32 s68, s98")
def stamp_end(a, kidx, nslots, wave_sreg="s3", ws_lo="s6", ws_hi="s7", tmpv=2):
    if not STAMP: return
    a("s_memrealtime s[98:99]")
    a("s_waitcnt lgkmcnt(0)")
    a("s_sub_u32 s69, s98, s68")
    a("s_mov_b64 exec, 1")
    a(f"s_lshl_b32 s96, s2, 4")
    a(f"s_add_u32 s96, s96, {wave_sreg}")
    a(f"s_lshl_b32 s96, s96, 6")
    a(f"s_add_u32 s96, s96, {WS_STAMP + kidx*512*16*64}")
    a(f"s_add_u32 s96, {ws_lo}, s96")
    a(f"s_addc_u32 s97, {ws_hi}, 0")
    a(f"v_mov_b32 v{tmpv}, 0")
    for i in range(nslots):
        a(f"v_mov_b32 v{tmpv+1}, s{70+i}")
        a(f"global_store_dword v{tmpv}, v{tmpv+1}, s[96:97] offset:{4*i}")
    a(f"v_mov_b32 v{tmpv+1}, s69")
    a(f"global_store_dword v{tmpv}, v{tmpv+1}, s[96:97] offset:60")
    a(f"v_mov_b32 v{tmpv+1}, s68")
    a(f"global_store_dword v{tmpv}, v{tmpv+1}, s[96:97] offset:56")
```

```python
from asmlib import *
import math

LOG2E = 1.4426950408889634
QSCALE = (20 ** -0.5) * LOG2E
GC0 = -2.0 * math.sqrt(2.0/math.pi) * LOG2E
GC1 = GC0 * 0.044715

NKS = 10
LDS_B = 98304
K1_LDS = 98304 + 3*16384

def gen_k1():
    a = Asm()
    name = "k1_gemm_kernel"
    a.lines.append(kernel_header(name))
    vDA = [4,5,6,7]; vDB = [8,9]
    vA = [10,11,12,13]; vA2 = [14,15,16,17]; vB = [18,19]
    FR = [20, 36]
    ACC = 64
    def acc(mi, ni): return ACC + (mi*2+ni)*16
    a(f"""
    s_cmp_ge_u32 s2, 216
    s_cbranch_scc1 K1_END
    s_load_dwordx2 s[4:5], s[0:1], {KA_WQKV}
    s_load_dwordx2 s[6:7], s[0:1], {KA_WS}
    s_load_dwordx2 s[8:9], s[0:1], {KA_W1}
    s_load_dwordx2 s[10:11], s[0:1], {KA_B1}
    v_lshrrev_b32 v2, 6, v0
    v_and_b32 v1, 63, v0
    s_and_b32 s34, s2, 7             ; mt
    s_lshr_b32 s35, s2, 3            ; nt
    v_readfirstlane_b32 s3, v2
    s_lshr_b32 s36, s3, 1            ; wm
    s_and_b32 s37, s3, 1             ; wn
    s_waitcnt lgkmcnt(0)
    """)
    stamp(a, 0)
    a(f"""
    s_mov_b32 s20, s6
    s_and_b32 s21, s7, 0xffff
    s_mov_b32 s22, {WS_END}
    s_mov_b32 s23, 0x20000
    s_cmp_lt_u32 s35, 15
    s_cselect_b32 s38, {WS_XN}, {WS_Y}
    s_mul_i32 s39, s34, {256*1280}
    s_add_u32 s38, s38, s39
    s_add_u32 s12, s6, s38
    s_addc_u32 s13, s7, 0
    s_and_b32 s13, s13, 0xffff
    s_mov_b32 s14, {256*1280}
    s_mov_b32 s15, 0x20000
    ; SRD_B s[16:19]
    s_cmp_lt_u32 s35, 15
    s_cselect_b32 s16, s4, s8
    s_cselect_b32 s17, s5, s9
    s_cselect_b32 s28, 3840, 3072
    s_cselect_b32 s38, 0, 15
    s_cselect_b32 s18, {640*3840}, {640*3072}
    s_sub_u32 s38, s35, s38
    s_lshl_b32 s39, s38, 8
    s_add_u32 s16, s16, s39
    s_addc_u32 s17, s17, 0
    s_and_b32 s17, s17, 0xffff
    s_sub_u32 s18, s18, s39
    s_mov_b32 s19, 0x20000
    s_lshl_b32 s31, s28, 6           ; 64*ldb
    s_lshl_b32 s32, s3, 12           ; w*4096
    s_lshl_b32 s33, s3, 11
    s_add_u32 s33, s33, {LDS_B}
    """)
    a(f"""
    v_lshrrev_b32 v3, 5, v1          ; h
    s_cmp_lt_u32 s35, 15
    s_cbranch_scc1 K1_NOBIAS
    s_mov_b32 s24, s10
    s_and_b32 s25, s11, 0xffff
    s_mov_b32 s26, {1536*2}
    s_mov_b32 s27, 0x20000
    s_lshl_b32 s39, s38, 8           ; (nt-15)*128*2
    s_lshl_b32 s40, s37, 7           ; wn*64*2
    s_add_u32 s39, s39, s40
    v_lshlrev_b32 v52, 3, v3         ; h*8
    """)
    for ni in range(2):
        for g in range(4):
            a(f"buffer_load_dwordx2 v[{FR[0]+2*(ni*4+g)}:{FR[0]+2*(ni*4+g)+1}], v52, s[24:27], s39 offen offset:{ni*64+g*16}")
    a.label("K1_NOBIAS")
    a(f"""
    v_lshrrev_b32 v52, 3, v1         ; l/8
    v_and_b32 v53, 7, v1             ; c'
    v_lshrrev_b32 v54, 4, v1         ; l/16
    s_lshl_b32 s39, s3, 5            ; w*32 rows
    s_movk_i32 s40, 1280
    """)
    for i in range(4):
        a(f"""
        v_add_u32 v55, s39, v52
        v_add_u32 v55, {i*8}, v55
        v_mul_lo_u32 v55, v55, s40
        v_add_u32 v56, {(i%2)*4}, v54
        v_and_b32 v56, 7, v56
        v_xor_b32 v56, v53, v56
        v_lshl_add_u32 v{vDA[i]}, v56, 4, v55
        """)
        if i: a(f"v_subrev_u32 v{vDA[i]}, {i*1024}, v{vDA[i]}")
    a(f"""
    v_and_b32 v53, 15, v1            ; c' (0..15)
    v_lshlrev_b32 v56, 2, v54        ; (l/16)<<2
    v_xor_b32 v56, v53, v56          ; c
    s_lshl_b32 s39, s3, 3            ; w*8 krows
    """)
    for i in range(2):
        a(f"""
        v_add_u32 v55, s39, v54
        v_add_u32 v55, {i*4}, v55
        v_mul_lo_u32 v55, v55, s28
        v_lshl_add_u32 v{vDB[i]}, v56, 4, v55
        """)
        if i: a(f"v_subrev_u32 v{vDB[i]}, {i*1024}, v{vDB[i]}")
    a("s_mov_b32 s29, 0")
    a("s_mov_b32 s30, 0")
    def dma(ks):
        buf = ks % 3
        a(f"s_add_u32 m0, s32, {buf*32768}")
        a("s_nop 0")
        for i in range(4):
            a(f"buffer_load_dwordx4 v{vDA[i]}, s[12:15], s29 offen offset:{i*1024} lds")
        a(f"s_add_u32 m0, s33, {buf*16384}")
        a("s_add_u32 s29, s29, 128")
        for i in range(2):
            a(f"buffer_load_dwordx4 v{vDB[i]}, s[16:19], s30 offen offset:{i*1024} lds")
        a("s_add_u32 s30, s30, s31")
    dma(0); dma(1); dma(2)
    a(f"""
    v_and_b32 v52, 31, v1            ; r
    s_lshl_b32 s39, s36, 6           ; wm*64
    v_add_u32 v53, s39, v52
    v_lshlrev_b32 v53, 7, v53        ; row*128
    v_lshrrev_b32 v54, 1, v52
    v_and_b32 v54, 7, v54            ; f
    """)
    for s in range(4):
        a(f"""
        v_add_u32 v55, {2*s}, v3
        v_xor_b32 v55, v55, v54
        v_lshl_add_u32 v{vA[s]}, v55, 4, v53
        v_add_u32 v{vA2[s]}, 0x10000, v{vA[s]}
        """)
    a(f"""
    v_lshrrev_b32 v52, 4, v1         ; gq
    v_and_b32 v53, 15, v1            ; i
    v_lshrrev_b32 v54, 2, v53        ; i/4
    v_lshrrev_b32 v55, 1, v52        ; gq/2
    v_lshl_add_u32 v55, v55, 3, v54
    v_lshlrev_b32 v55, 8, v55        ; *256
    v_and_b32 v56, 1, v53
    v_lshl_add_u32 v55, v56, 3, v55  ; + (i%2)*8
    v_add_u32 v55, {LDS_B}, v55
    v_and_b32 v56, 1, v52            ; gq%2
    v_lshlrev_b32 v56, 1, v56
    v_bfe_u32 v57, v53, 1, 1         ; (i%4)/2
    v_add_u32 v56, v56, v57
    s_lshl_b32 s39, s37, 3           ; wn*8
    v_add_u32 v56, s39, v56
    v_lshlrev_b32 v54, 2, v54        ; (i/4)<<2
    """)
    for ni in range(2):
        a(f"""
        v_add_u32 v57, {ni*4}, v56
        v_xor_b32 v57, v57, v54
        v_lshl_add_u32 v{vB[ni]}, v57, 4, v55
        """)
    a(f"""
    s_cmp_lt_u32 s35, 15
    s_cbranch_scc1 K1_ZERO
    s_waitcnt vmcnt(18)
    """)
    for ni in range(2):
        for g in range(4):
            for d in range(2):
                src = FR[0] + 2*(ni*4+g) + d
                for mi in range(2):
                    a(f"v_lshlrev_b32 v{acc(mi,ni)+4*g+2*d}, 16, v{src}")
                    a(f"v_and_b32 v{acc(mi,ni)+4*g+2*d+1}, 0xffff0000, v{src}")
    a("s_branch K1_INITDONE")
    a.label("K1_ZERO")
    for r in range(64):
        a(f"v_mov_b32 v{ACC+r}, 0")
    a.label("K1_INITDONE")
    a(f"""
    s_cmp_lt_u32 s35, 10
    s_cbranch_scc1 K1_MAIN_N
    s_cmp_ge_u32 s35, 15
    s_cbranch_scc1 K1_MAIN_N
    """)
    def reads(ks, s, p):
        buf = ks % 3
        va = vA[s] if buf < 2 else vA2[s]
        offA = buf*32768 if buf < 2 else 0
        F = FR[p]
        a(f"ds_read_b128 v[{F}:{F+3}], v{va} offset:{offA}")
        a(f"ds_read_b128 v[{F+4}:{F+7}], v{va} offset:{offA+4096}")
        for ni in range(2):
            for t in range(2):
                a(f"ds_read_b64_tr_b16 v[{F+8+4*ni+2*t}:{F+9+4*ni+2*t}], v{vB[ni]} offset:{buf*16384+s*4096+t*1024}")
    def mfmas(p, vmode):
        F = FR[p]
        for mi in range(2):
            for ni in range(2):
                A = f"v[{F+4*mi}:{F+4*mi+3}]"; B = f"v[{F+8+4*ni}:{F+8+4*ni+3}]"
                c = acc(mi, ni)
                if vmode: a(f"v_mfma_f32_32x32x16_bf16 v[{c}:{c+15}], {A}, {B}, v[{c}:{c+15}]")
                else:     a(f"v_mfma_f32_32x32x16_bf16 v[{c}:{c+15}], {B}, {A}, v[{c}:{c+15}]")
    def mainloop(vmode):
        a("s_waitcnt vmcnt(12)")
        a("s_barrier")
        stamp(a, 1)
        reads(0, 0, 0)
        step = 0
        for ks in range(NKS):
            for s in range(4):
                p = step % 2
                if s < 3:
                    reads(ks, s+1, 1-p)
                    a("s_waitcnt lgkmcnt(6)")
                else:
                    if ks + 1 < NKS:
                        a(f"s_waitcnt vmcnt({6 if ks+2 < NKS else 0}) lgkmcnt(0)")
                        a("s_barrier")
                        if ks + 3 < NKS: dma(ks+3)
                        reads(ks+1, 0, 1-p)
                    else:
                        a("s_waitcnt lgkmcnt(0)")
                mfmas(p, vmode)
                step += 1
                if s == 3 and ks in (0, 4): stamp(a, 2 + ks//4)
        a("s_nop 15")
        stamp(a, 4)
    a.label("K1_MAIN_V")
    mainloop(True)
    a(f"""
    v_and_b32 v52, 31, v1
    s_sub_u32 s39, s35, 10
    s_lshl_b32 s39, s39, 7           ; (nt-10)*128
    s_lshl_b32 s40, s37, 6
    s_add_u32 s39, s39, s40          ; + wn*64
    v_add_u32 v52, s39, v52
    s_lshl_b32 s40, s34, 3
    s_lshl_b32 s41, s36, 1
    s_add_u32 s40, s40, s41
    s_mul_i32 s40, s40, 2560
    s_add_u32 s40, s40, {WS_KV + 1280}
    s_add_u32 s41, s40, 2560         ; mi=1
    s_movk_i32 s42, 3277
    s_mov_b32 s43, {163840}
    v_mul_u32_u24 v53, 20, v3        ; h*20
    """)
    for ni in range(2):
        a(f"""
        v_add_u32 v54, {ni*32}, v52
        v_mul_u32_u24 v55, s42, v54
        v_lshrrev_b32 v55, 16, v55       ; head
        v_mul_u32_u24 v56, 20, v55
        v_sub_u32 v56, v54, v56          ; d
        v_add_u32 v56, v56, v53          ; h*20+d
        v_mul_lo_u32 v55, v55, s43
        v_lshl_add_u32 v{58+ni}, v56, 4, v55
        """)
    t = FR[0]
    k = 0
    for mi in range(2):
        for ni in range(2):
            c = acc(mi, ni)
            for pv in range(2):
                r = t + 4*(k % 8); k += 1
                for d in range(4):
                    a(f"v_cvt_pk_bf16_f32 v{r+d}, v{c+8*pv+2*d}, v{c+8*pv+2*d+1}")
                a(f"buffer_store_dwordx4 v[{r}:{r+3}], v{58+ni}, s[20:23], s{40+mi} offen offset:{pv*640}")
    a("s_waitcnt vmcnt(0)")
    stamp(a, 5); stamp_end(a, 1, 6)
    a("s_endpgm")
    a.label("K1_MAIN_N")
    mainloop(False)
    a(f"""
    s_cmp_ge_u32 s35, 15
    s_cbranch_scc1 K1_EPI_H
    """)
    a(f"""
    s_cmp_lt_u32 s35, 5
    s_cselect_b32 s39, 0, 5
    s_cselect_b32 s43, {81920}, {163840}
    s_cselect_b32 s44, 1280, 2560
    s_cselect_b32 s45, {WS_QF}, {WS_KV}
    s_cselect_b32 s46, 0x{f32bits(QSCALE):08x}, 0x3f800000
    s_sub_u32 s39, s35, s39
    s_lshl_b32 s39, s39, 7
    s_lshl_b32 s40, s37, 6
    s_add_u32 s39, s39, s40
    v_lshlrev_b32 v52, 2, v3
    v_add_u32 v52, s39, v52          ; + 4h
    s_lshl_b32 s40, s34, 3
    s_lshl_b32 s41, s36, 1
    s_add_u32 s40, s40, s41
    s_mul_i32 s40, s40, s44
    s_add_u32 s40, s40, s45
    s_add_u32 s41, s40, s44          ; mi=1
    s_movk_i32 s42, 3277
    v_and_b32 v53, 31, v1            ; key
    v_lshlrev_b32 v54, 4, v53        ; key*16
    v_lshlrev_b32 v53, 3, v53        ; key*8
    v_add_u32 v53, 1024, v53         ; 1024 + key*8
    """)
    k = 0
    for ni in range(2):
        for g in range(4):
            a(f"""
            v_add_u32 v55, {ni*32+8*g}, v52      ; n'
            v_mul_u32_u24 v56, s42, v55
            v_lshrrev_b32 v56, 16, v56           ; head
            v_mul_u32_u24 v57, 20, v56
            v_sub_u32 v57, v55, v57              ; d
            v_lshrrev_b32 v58, 3, v57            ; d/8
            v_lshl_add_u32 v58, v58, 9, v54      ; (d/8)*512 + key*16
            v_and_b32 v59, 7, v57
            v_lshl_add_u32 v58, v59, 1, v58      ; + (d%8)*2
            v_cmp_gt_u32 vcc, 16, v57
            v_mul_lo_u32 v56, v56, s43
            s_nop 0
            v_cndmask_b32 v58, v53, v58, vcc
            v_add_u32 v58, v58, v56
            """)
            for mi in range(2):
                c = acc(mi, ni) + 4*g
                r = FR[0] + 2*(k % 16); k += 1
                for j in range(4):
                    a(f"v_mul_f32 v{c+j}, s46, v{c+j}")
                a(f"v_cvt_pk_bf16_f32 v{r}, v{c}, v{c+1}")
                a(f"v_cvt_pk_bf16_f32 v{r+1}, v{c+2}, v{c+3}")
                a(f"buffer_store_dwordx2 v[{r}:{r+1}], v58, s[20:23], s{40+mi} offen")
    a("s_waitcnt vmcnt(0)")
    stamp(a, 5); stamp_end(a, 1, 6)
    a("s_endpgm")
    a.label("K1_EPI_H")
    a(f"""
    v_and_b32 v52, 31, v1
    v_lshlrev_b32 v52, 4, v52
    v_lshl_add_u32 v52, v3, 3, v52   ; key*16 + h*8
    s_lshl_b32 s40, s34, 3
    s_lshl_b32 s41, s36, 1
    s_add_u32 s40, s40, s41
    s_mul_i32 s40, s40, {136*1024}
    s_sub_u32 s39, s35, 15
    s_lshl_b32 s39, s39, 3
    s_lshl_b32 s41, s37, 2
    s_add_u32 s39, s39, s41
    s_add_u32 s39, s39, 40
    s_lshl_b32 s39, s39, 10
    s_add_u32 s40, s40, s39
    s_add_u32 s40, s40, {WS_AF}
    s_add_u32 s41, s40, {136*1024}
    v_mov_b32 v53, 0x{f32bits(GC1):08x}
    """)
    k = 0
    for mi in range(2):
        for ni in range(2):
            for g in range(4):
                c = acc(mi, ni) + 4*g
                T = 54
                for j in range(4): a(f"v_mul_f32 v{T+j}, v{c+j}, v{c+j}")
                for j in range(4): a(f"v_fmaak_f32 v{T+j}, v{T+j}, v53, 0x{f32bits(GC0):08x}")
                for j in range(4): a(f"v_mul_f32 v{T+j}, v{T+j}, v{c+j}")
                for j in range(4): a(f"v_exp_f32 v{T+j}, v{T+j}")
                for j in range(4): a(f"v_add_f32 v{T+j}, 1.0, v{T+j}")
                for j in range(4): a(f"v_rcp_f32 v{T+j}, v{T+j}")
                for j in range(4): a(f"v_mul_f32 v{T+j}, v{T+j}, v{c+j}")
                r = FR[0] + 2*(k % 16); k += 1
                a(f"v_cvt_pk_bf16_f32 v{r}, v{T}, v{T+1}")
                a(f"v_cvt_pk_bf16_f32 v{r+1}, v{T+2}, v{T+3}")
                a(f"buffer_store_dwordx2 v[{r}:{r+1}], v52, s[20:23], s{40+mi} offen offset:{(g%2)*512 + (ni*2+g//2)*1024}")
    a("s_waitcnt vmcnt(0)")
    stamp(a, 5); stamp_end(a, 1, 6)
    a.label("K1_END")
    a("s_endpgm")
    return a.text(), kernel_desc(name, 128, 102 if STAMP else 56), f"; @launch kernel={name} grid=(216,1,1) block=(512,1,1) lds={K1_LDS}"
```

```python
from asmlib import *
import os

K2_RING = 40960
K2_FLAG = 40960
K2_RED = 41984
K2_LDS = K2_RED + 81920

def gen_k2():
    a = Asm()
    name = "k2_attn_kernel"
    a.lines.append(kernel_header(name))
    Q = [4, 10]; QH = [8, 14]; NC = [16, 32]; O = [48, 64]; S = [[80, 96], [112, 128]]; P = [144, 152]
    KLb = [160, 166]; KHb = [164, 170]; V = [172, 180]
    vKa = 188; vKHa = 189; vVa = 190; vDma = 191; T = 192
    a(f"""
    s_cmp_ge_u32 s2, 256
    s_cbranch_scc1 K2_END
    s_load_dwordx2 s[6:7], s[0:1], {KA_WS}
    v_lshrrev_b32 v2, 6, v0
    v_and_b32 v1, 63, v0
    s_and_b32 s34, s2, 7
    s_lshl_b32 s34, s34, 2
    s_bfe_u32 s35, s2, 0x20003       ; (wg>>3)&3
    s_add_u32 s34, s34, s35          ; head
    s_lshr_b32 s35, s2, 5            ; qb
    v_readfirstlane_b32 s3, v2       ; w
    v_lshrrev_b32 v3, 5, v1          ; h
    v_and_b32 v2, 31, v1
    s_waitcnt lgkmcnt(0)
    """)
    stamp(a, 0)
    a(f"""
    s_mov_b32 s20, s6
    s_and_b32 s21, s7, 0xffff
    s_mov_b32 s22, {WS_END}
    s_mov_b32 s23, 0x20000
    s_cmp_ge_u32 s3, 4
    s_cbranch_scc1 K2_GEMM
    s_lshl_b32 s35, s35, 3
    s_lshl_b32 s36, s3, 1
    s_add_u32 s35, s35, s36          ; qtile (u=0)
    s_mov_b32 s40, 0x000fffff
    s_mov_b32 s41, 0x000fffff
    s_mov_b32 s42, 0
    s_mov_b32 s43, -1
    s_mov_b32 s44, -1
    s_mov_b32 s45, 0
    s_mov_b32 s46, 0
    s_mul_i32 s36, s34, 81920
    s_mul_i32 s37, s35, 1280
    s_add_u32 s36, s36, s37
    s_add_u32 s36, s36, {WS_QF}
    s_mul_i32 s37, s34, 163840
    s_add_u32 s37, s37, {WS_KV}
    v_lshlrev_b32 v{vKa}, 4, v1                 ; lane*16
    v_lshlrev_b32 v{vKHa}, 3, v2
    v_add_u32 v{vKHa}, 1024, v{vKHa}            ; 1024 + (l%32)*8
    v_mul_u32_u24 v{vVa}, 20, v3
    v_add_u32 v{vVa}, v{vVa}, v2
    v_lshlrev_b32 v{vVa}, 4, v{vVa}
    v_add_u32 v{vVa}, 1280, v{vVa}              ; 1280 + (h*20+d)*16
    s_lshl_b32 s38, s3, 11                      ; w*2048
    v_add_u32 v{vDma}, s38, v{vKa}
    """)
    for u in range(2):
        a(f"v_mov_b32 v{QH[u]}, 0")
        a(f"v_mov_b32 v{QH[u]+1}, 0")
    for u in range(2):
        a(f"buffer_load_dwordx4 v[{Q[u]}:{Q[u]+3}], v{vKa}, s[20:23], s36 offen offset:{1280*u}")
    a("s_mov_b64 exec, s[44:45]")
    for u in range(2):
        a(f"buffer_load_dwordx2 v[{QH[u]}:{QH[u]+1}], v{vKHa}, s[20:23], s36 offen offset:{1280*u}")
    a(f"""
    s_mov_b64 exec, -1
    v_mov_b32 v{T}, {K2_FLAG}
    v_mov_b32 v{T+1}, 0
    ds_write_b32 v{T}, v{T+1}
    v_mov_b32 v{T+2}, 0
    v_mov_b32 v{T+3}, 0x3f803f80
    v_cmp_eq_u32 vcc, 20, v2
    v_cmp_eq_u32 s[48:49], 24, v2
    s_or_b64 vcc, vcc, s[48:49]
    s_nop 1
    v_cndmask_b32 v{T+2}, v{T+2}, v{T+3}, vcc
    """)
    for b in range(2):
        for r in range(8):
            a(f"v_mov_b32 v{V[b]+r}, v{T+2}")
    a.label("K2_RESTART")
    a("s_mov_b32 s39, s37")
    def dma(slot):
        a(f"s_add_u32 m0, s38, {slot*8192}")
        a("s_nop 0")
        a(f"buffer_load_dwordx4 v{vDma}, s[20:23], s39 offen lds")
        a(f"buffer_load_dwordx4 v{vDma}, s[20:23], s39 offen offset:1024 lds")
        a("s_add_u32 s39, s39, 8192")
    dma(0); dma(1); dma(2)
    for u in range(2):
        for r in range(16):
            a(f"v_mov_b32 v{O[u]+r}, 0")
        for r in range(4, 8):
            a(f"v_mov_b32 v{P[u]+r}, 0")
    a("s_waitcnt vmcnt(4) lgkmcnt(0)")
    a("s_barrier")
    dma(3)
    def readK(tt):
        off = (tt % 16) * 2560
        kl = KLb[tt % 2]; kh = KHb[tt % 2]
        a(f"ds_read_b128 v[{kl}:{kl+3}], v{vKa} offset:{off}")
        a(f"ds_read_b64 v[{kh}:{kh+1}], v{vKHa} offset:{off}")
    def readV(tt):
        off = (tt % 16) * 2560
        b = V[tt % 2]
        a("s_mov_b64 exec, s[40:41]")
        a(f"ds_read_b128 v[{b}:{b+3}], v{vVa} offset:{off}")
        a(f"ds_read_b128 v[{b+4}:{b+7}], v{vVa} offset:{off+640}")
        a("s_mov_b64 exec, -1")
    KL = KLb[0]; KH = KHb[0]
    def qk(u, sb, c):
        a(f"v_mfma_f32_32x32x16_bf16 v[{sb}:{sb+15}], v[{KL}:{KL+3}], v[{Q[u]}:{Q[u]+3}], {c}")
        a(f"v_mfma_f32_32x32x8_bf16 v[{sb}:{sb+15}], v[{KH}:{KH+1}], v[{QH[u]}:{QH[u]+1}], v[{sb}:{sb+15}]")
    def maxtree(sb, dst, first):
        if first:
            a(f"v_max3_f32 v{dst}, v{sb}, v{sb+1}, v{sb+2}")
            a(f"v_max_f32 v{dst}, v{dst}, v{sb+3}")
            rng = range(4, 16, 2)
        else:
            rng = range(0, 16, 2)
        for i in rng:
            a(f"v_max3_f32 v{dst}, v{dst}, v{sb+i}, v{sb+i+1}")
    def crosshalf_to_nc(u, m):
        a(f"""
        v_mov_b32 v{T+2}, v{m}
        v_mov_b32 v{T+3}, v{m}
        s_nop 1
        v_permlane32_swap_b32 v{T+2}, v{T+3}
        s_nop 1
        v_max_f32 v{T+2}, v{T+2}, v{T+3}
        """)
        for r in range(16):
            a(f"v_sub_f32 v{NC[u]+r}, 0, v{T+2}")
    readK(0)
    a("s_waitcnt lgkmcnt(0)")
    a(f"""
    s_cmp_lg_u32 s46, 0
    s_cbranch_scc1 K2_HAVE_NC
    """)
    qk(0, S[0][0], "0")
    qk(1, S[1][0], "0")
    a("s_nop 15")
    for u in range(2):
        maxtree(S[u][0], T+4+u, True)
    for u in range(2):
        crosshalf_to_nc(u, T+4+u)
    a("s_nop 1")
    a.label("K2_HAVE_NC")
    for u in range(2):
        qk(u, S[u][0], f"v[{NC[u]}:{NC[u]+15}]")
    readK(1)
    readV(0)
    a("s_mov_b32 s47, 0")
    stamp(a, 1)
    a.label("K2_LOOP")
    sync_at = {1:4, 4:0, 7:1, 10:2, 14:3}
    for tt in range(16):
        vb = V[tt % 2]; vp = V[(tt+1) % 2]
        kl = KLb[(tt+1) % 2]; kh = KHb[(tt+1) % 2]
        for u in range(2):
            sc = S[u][tt % 2]; sn = S[u][(tt+1) % 2]; Pu = P[u]; Ou = O[u]
            def e(i): a(f"v_exp_f32 v{sc+i}, v{sc+i}")
            def c(j): a(f"v_cvt_pk_bf16_f32 v{Pu+j}, v{sc+2*j}, v{sc+2*j+1}")
            if u == 0: a("s_waitcnt lgkmcnt(2)")
            a(f"v_mfma_f32_32x32x16_bf16 v[{sn}:{sn+15}], v[{kl}:{kl+3}], v[{Q[u]}:{Q[u]+3}], v[{NC[u]}:{NC[u]+15}]")
            e(0); e(1); e(2); c(0); e(3)
            a(f"v_mfma_f32_32x32x16_bf16 v[{Ou}:{Ou+15}], v[{vp+4}:{vp+7}], v[{Pu+4}:{Pu+7}], v[{Ou}:{Ou+15}]")
            if u == 1:
                if tt in sync_at:
                    a("s_waitcnt vmcnt(4) lgkmcnt(0)")
                    a("s_barrier")
                    dma(sync_at[tt])
                readK(tt+2)
                readV(tt+1)
            e(4); c(1); e(5); e(6); c(2); e(7)
            a(f"v_mfma_f32_32x32x8_bf16 v[{sn}:{sn+15}], v[{kh}:{kh+1}], v[{QH[u]}:{QH[u]+1}], v[{sn}:{sn+15}]")
            e(8); c(3); e(9); e(10); c(4); e(11)
            if u == 0: a("s_waitcnt lgkmcnt(0)")
            a(f"v_mfma_f32_32x32x16_bf16 v[{Ou}:{Ou+15}], v[{vb}:{vb+3}], v[{Pu}:{Pu+3}], v[{Ou}:{Ou+15}]")
            e(12); e(13); c(5); e(14); e(15); c(6); c(7)
    a(f"""
    s_add_u32 s47, s47, 1
    s_cmp_lt_u32 s47, 4
    s_cbranch_scc1 K2_LOOP
    """)
    for u in range(2):
        a(f"v_mfma_f32_32x32x16_bf16 v[{O[u]}:{O[u]+15}], v[{V[1]+4}:{V[1]+7}], v[{P[u]+4}:{P[u]+7}], v[{O[u]}:{O[u]+15}]")
    stamp(a, 2)
    a(f"""
    s_nop 15
    v_cndmask_b32 v{T+4}, v{O[0]+12}, v{O[0]+8}, s[42:43]     ; l (u=0)
    v_cndmask_b32 v{T+5}, v{O[1]+12}, v{O[1]+8}, s[42:43]     ; l (u=1)
    s_cmp_lg_u32 s46, 0
    s_cbranch_scc1 K2_FINISH
    v_mov_b32 v{T+6}, 0x5d800000
    v_cmp_nlt_f32 vcc, v{T+4}, v{T+6}
    v_cmp_nlt_f32 s[48:49], v{T+5}, v{T+6}
    v_mov_b32 v{T}, {K2_FLAG}
    v_mov_b32 v{T+1}, 1
    s_or_b64 vcc, vcc, s[48:49]
    s_and_saveexec_b64 s[48:49], vcc
    s_cbranch_execz K2_NOBAD
    ds_write_b32 v{T}, v{T+1}
    K2_NOBAD:
    s_mov_b64 exec, -1
    s_waitcnt vmcnt(0) lgkmcnt(0)
    s_barrier
    ds_read_b32 v{T+1}, v{T}
    s_waitcnt lgkmcnt(0)
    v_readfirstlane_b32 s48, v{T+1}
    s_cmp_eq_u32 s48, 0
    s_cbranch_scc1 K2_FINISH
    s_mov_b32 s46, 1
    s_mov_b32 s39, s37
    s_mov_b32 s47, 0
    v_mov_b32 v{T+4}, 0xff800000
    v_mov_b32 v{T+5}, 0xff800000
    K2_MAXLOOP:
    buffer_load_dwordx4 v[{KL}:{KL+3}], v{vKa}, s[20:23], s39 offen
    buffer_load_dwordx2 v[{KH}:{KH+1}], v{vKHa}, s[20:23], s39 offen
    s_waitcnt vmcnt(0)
    """)
    qk(0, S[0][0], "0")
    qk(1, S[1][0], "0")
    a("s_nop 15")
    for u in range(2):
        maxtree(S[u][0], T+4+u, False)
    a(f"""
    s_add_u32 s39, s39, 2560
    s_add_u32 s47, s47, 1
    s_cmp_lt_u32 s47, 64
    s_cbranch_scc1 K2_MAXLOOP
    """)
    for u in range(2):
        crosshalf_to_nc(u, T+4+u)
    a("s_barrier")
    a("s_branch K2_RESTART")
    a.label("K2_FINISH")
    a(f"""
    v_rcp_f32 v{T+4}, v{T+4}
    v_rcp_f32 v{T+5}, v{T+5}
    s_mul_i32 s48, s34, 20
    v_lshlrev_b32 v{T+6}, 2, v3
    v_add_u32 v{T+6}, s48, v{T+6}
    s_mul_i32 s48, s35, {136*1024}
    s_add_u32 s48, s48, {WS_AF}
    s_add_u32 s49, s48, {136*1024}
    v_lshlrev_b32 v{T+7}, 4, v2                ; q*16
    """)
    for g in range(3):
        a(f"""
        v_add_u32 v{T+8}, {8*g}, v{T+6}            ; k
        v_lshrrev_b32 v{T+9}, 3, v{T+8}            ; k>>3 = s*2+hh
        v_lshl_add_u32 v{T+9}, v{T+9}, 9, v{T+7}   ; *512 + q*16
        v_and_b32 v{T+8}, 7, v{T+8}
        v_lshl_add_u32 v{T+9}, v{T+8}, 1, v{T+9}
        """)
        for u in range(2):
            for j in range(4):
                a(f"v_mul_f32 v{O[u]+4*g+j}, v{O[u]+4*g+j}, v{T+4+u}")
            a(f"v_cvt_pk_bf16_f32 v{P[u]+2*g}, v{O[u]+4*g}, v{O[u]+4*g+1}")
            a(f"v_cvt_pk_bf16_f32 v{P[u]+2*g+1}, v{O[u]+4*g+2}, v{O[u]+4*g+3}")
        if g == 2: a("s_mov_b64 exec, s[44:45]")
        for u in range(2):
            a(f"buffer_store_dwordx2 v[{P[u]+2*g}:{P[u]+2*g+1}], v{T+9}, s[20:23], s{48+u} offen")
    if STAMP:
        a("s_waitcnt vmcnt(0)")
        stamp(a, 3); stamp_end(a, 2, 4)
    a("s_endpgm")
    a.label("K2_GEMM")
    NS = 24; DEPTH = 3
    ACC = 16; FB = 96
    a(f"""
    s_sub_u32 s36, s3, 4             ; g
    s_and_b32 s34, s2, 7
    s_lshl_b32 s34, s34, 3
    s_bfe_u32 s35, s2, 0x30003       ; (wg>>3)&7
    s_add_u32 s34, s34, s35          ; mt32
    s_lshr_b32 s35, s2, 6            ; ng
    v_lshlrev_b32 v4, 4, v1          ; lane*16
    v_add_u32 v5, 4096, v4
    s_mul_i32 s39, s36, {NS}
    s_add_u32 s39, s39, 40           ; first s
    s_mul_i32 s37, s34, {136*1024}
    s_lshl_b32 s38, s39, 10
    s_add_u32 s37, s37, s38
    s_add_u32 s37, s37, {WS_AF}      ; A soffset
    s_mul_i32 s38, s39, 20
    s_mul_i32 s39, s35, 5
    s_add_u32 s38, s38, s39
    s_lshl_b32 s38, s38, 10
    s_add_u32 s38, s38, {WS_WF}      ; B soffset
    """)
    def loads(i):
        F = FB + (i % DEPTH)*24
        a(f"buffer_load_dwordx4 v[{F}:{F+3}], v4, s[20:23], s37 offen")
        for j in range(4):
            a(f"buffer_load_dwordx4 v[{F+4+4*j}:{F+7+4*j}], v4, s[20:23], s38 offen offset:{1024*j}")
        a(f"buffer_load_dwordx4 v[{F+20}:{F+23}], v5, s[20:23], s38 offen")
        a("s_add_u32 s37, s37, 1024")
        a("s_add_u32 s38, s38, 20480")
    for i in range(DEPTH-1): loads(i)
    for r in range(80): a(f"v_mov_b32 v{ACC+r}, 0")
    a("s_barrier")
    for i in range(NS):
        if i + DEPTH - 1 < NS:
            loads(i + DEPTH - 1)
        rem = min(DEPTH-1, NS-1-i)
        a(f"s_waitcnt vmcnt({6*rem})")
        F = FB + (i % DEPTH)*24
        for j in range(5):
            c = ACC + 16*j
            a(f"v_mfma_f32_32x32x16_bf16 v[{c}:{c+15}], v[{F+4+4*j}:{F+7+4*j}], v[{F}:{F+3}], v[{c}:{c+15}]")
        if i % 2 == 1: a("s_barrier")
    a(f"""
    s_mul_i32 s40, s36, 20480
    s_add_u32 s40, s40, {K2_RED}
    v_add_u32 v8, s40, v4
    s_nop 7
    """)
    for idx in range(20):
        c = ACC + 4*idx
        a(f"ds_write_b128 v8, v[{c}:{c+3}] offset:{1024*idx}")
    a(f"""
    s_mul_i32 s40, s36, 5120
    s_add_u32 s40, s40, {K2_RED}
    v_add_u32 v9, s40, v4
    v_add_u32 v10, 0xA000, v9
    s_lshl_b32 s40, s34, 2
    s_add_u32 s40, s40, s35
    s_mul_i32 s40, s40, 20
    s_mul_i32 s41, s36, 5
    s_add_u32 s40, s40, s41
    s_lshl_b32 s40, s40, 10
    s_add_u32 s40, s40, {WS_MP}
    s_waitcnt lgkmcnt(0)
    s_barrier
    """)
    RB = ACC
    for e in range(5):
        for ww in range(4):
            base = 9 if ww < 2 else 10
            a(f"ds_read_b128 v[{RB+16*e+4*ww}:{RB+16*e+4*ww+3}], v{base} offset:{(ww%2)*20480 + 1024*e}")
    for e in range(5):
        a(f"s_waitcnt lgkmcnt({min(15,4*(4-e))})")
        r = RB + 16*e
        for j in range(4):
            a(f"v_add_f32 v{r+j}, v{r+j}, v{r+4+j}")
            a(f"v_add_f32 v{r+8+j}, v{r+8+j}, v{r+12+j}")
        for j in range(4):
            a(f"v_add_f32 v{r+j}, v{r+j}, v{r+8+j}")
        if e < 4: a(f"buffer_store_dwordx4 v[{r}:{r+3}], v4, s[20:23], s40 offen offset:{1024*e}")
        else:     a(f"buffer_store_dwordx4 v[{r}:{r+3}], v5, s[20:23], s40 offen")
    if STAMP:
        a("s_waitcnt vmcnt(0)")
        stamp(a, 1); stamp(a, 2); stamp(a, 3); stamp_end(a, 2, 4)
    a.label("K2_END")
    a("s_endpgm")
    return a.text(), kernel_desc(name, 204, 102 if STAMP else 56), f"; @launch kernel={name} grid=(256,1,1) block=(512,1,1) lds={K2_LDS}"
```

```python
from asmlib import *

K3_LDS = 81920
def gen_k3():
    a = Asm()
    name = "k3_out_kernel"
    a.lines.append(kernel_header(name))
    NS = 10; DEPTH = 5
    ACC = 16
    FB = 96
    a(f"""
    s_cmp_ge_u32 s2, 256
    s_cbranch_scc1 K3_END
    s_load_dwordx2 s[6:7], s[0:1], {KA_WS}
    s_load_dwordx2 s[8:9], s[0:1], {KA_X}
    s_load_dwordx2 s[10:11], s[0:1], {KA_B2}
    s_load_dwordx2 s[4:5], s[0:1], {KA_OUT}
    v_lshrrev_b32 v2, 6, v0
    v_and_b32 v1, 63, v0
    s_and_b32 s34, s2, 63            ; mt32
    s_lshr_b32 s35, s2, 6            ; ng
    v_readfirstlane_b32 s3, v2
    v_lshlrev_b32 v4, 4, v1          ; lane*16
    v_add_u32 v5, 4096, v4
    s_waitcnt lgkmcnt(0)
    """)
    stamp(a, 0)
    a(f"""
    s_mov_b32 s20, s6
    s_and_b32 s21, s7, 0xffff
    s_mov_b32 s22, {WS_END}
    s_mov_b32 s23, 0x20000
    s_mul_i32 s36, s3, {NS}          ; first s
    s_mul_i32 s37, s34, {136*1024}
    s_lshl_b32 s38, s36, 10
    s_add_u32 s37, s37, s38
    s_add_u32 s37, s37, {WS_AF}      ; A soffset
    s_mul_i32 s38, s36, 20
    s_mul_i32 s39, s35, 5
    s_add_u32 s38, s38, s39
    s_lshl_b32 s38, s38, 10
    s_add_u32 s38, s38, {WS_WF}      ; B soffset
    """)
    def loads(i):
        F = FB + (i % DEPTH)*24
        a(f"buffer_load_dwordx4 v[{F}:{F+3}], v4, s[20:23], s37 offen")
        for j in range(4):
            a(f"buffer_load_dwordx4 v[{F+4+4*j}:{F+7+4*j}], v4, s[20:23], s38 offen offset:{1024*j}")
        a(f"buffer_load_dwordx4 v[{F+20}:{F+23}], v5, s[20:23], s38 offen")
        a("s_add_u32 s37, s37, 1024")
        a("s_add_u32 s38, s38, 20480")
    for i in range(DEPTH-1): loads(i)
    for r in range(80): a(f"v_mov_b32 v{ACC+r}, 0")
    for i in range(NS):
        if i + DEPTH - 1 < NS:
            loads(i + DEPTH - 1)
        rem = min(DEPTH-1, NS-1-i)
        a(f"s_waitcnt vmcnt({6*rem})")
        F = FB + (i % DEPTH)*24
        for j in range(5):
            c = ACC + 16*j
            a(f"v_mfma_f32_32x32x16_bf16 v[{c}:{c+15}], v[{F+4+4*j}:{F+7+4*j}], v[{F}:{F+3}], v[{c}:{c+15}]")
    stamp(a, 1)
    a(f"""
    s_mov_b32 s12, s8
    s_and_b32 s13, s9, 0xffff
    s_mov_b32 s14, {2048*1280}
    s_mov_b32 s15, 0x20000
    s_mov_b32 s16, s10
    s_and_b32 s17, s11, 0xffff
    s_mov_b32 s18, 1280
    s_mov_b32 s19, 0x20000
    s_mov_b32 s24, s4
    s_and_b32 s25, s5, 0xffff
    s_mov_b32 s26, {2048*1280}
    s_mov_b32 s27, 0x20000
    v_lshrrev_b32 v3, 5, v1          ; h
    v_and_b32 v2, 31, v1
    s_mul_i32 s39, s35, 320
    s_mul_i32 s40, s3, 80            ; 5w*8*2 bytes
    s_add_u32 s39, s39, s40
    v_lshlrev_b32 v6, 3, v3          ; 4h*2
    v_add_u32 v6, s39, v6            ; b2 voff
    s_lshl_b32 s40, s34, 5
    v_add_u32 v7, s40, v2            ; token
    s_movk_i32 s41, 1280
    v_mul_lo_u32 v7, v7, s41
    v_add_u32 v7, v7, v6
    """)
    XB = FB
    for e in range(5):
        a(f"buffer_load_dwordx2 v[{XB+4*e}:{XB+4*e+1}], v7, s[12:15], 0 offen offset:{16*e}")
        a(f"buffer_load_dwordx2 v[{XB+4*e+2}:{XB+4*e+3}], v6, s[16:19], 0 offen offset:{16*e}")
    a(f"""
    s_lshl_b32 s40, s34, 2
    s_add_u32 s40, s40, s35
    s_mul_i32 s40, s40, 20
    s_mul_i32 s41, s3, 5
    s_add_u32 s40, s40, s41
    s_lshl_b32 s40, s40, 10
    s_add_u32 s40, s40, {WS_MP}
    """)
    MB = XB + 20
    for e in range(5):
        if e < 4: a(f"buffer_load_dwordx4 v[{MB+4*e}:{MB+4*e+3}], v4, s[20:23], s40 offen offset:{1024*e}")
        else:     a(f"buffer_load_dwordx4 v[{MB+4*e}:{MB+4*e+3}], v5, s[20:23], s40 offen")
    a(f"""
    s_mul_i32 s40, s3, 20480
    v_add_u32 v8, s40, v4
    s_nop 7
    """)
    for idx in range(20):
        c = ACC + 4*idx
        a(f"ds_write_b128 v8, v[{c}:{c+3}] offset:{1024*idx}")
    a(f"""
    s_mul_i32 s40, s3, 5120
    v_add_u32 v9, s40, v4
    v_add_u32 v10, 0xA000, v9        ; +40960
    s_waitcnt lgkmcnt(0)
    s_barrier
    """)
    RB = ACC
    for e in range(5):
        for ww in range(4):
            base = 9 if ww < 2 else 10
            a(f"ds_read_b128 v[{RB+16*e+4*ww}:{RB+16*e+4*ww+3}], v{base} offset:{(ww%2)*20480 + 1024*e}")
    a("s_waitcnt vmcnt(0)")
    for e in range(5):
        a(f"s_waitcnt lgkmcnt({min(15,4*(4-e))})")
        r = RB + 16*e
        xb = XB + 4*e
        for j in range(4):
            a(f"v_add_f32 v{r+j}, v{r+j}, v{r+4+j}")
            a(f"v_add_f32 v{r+8+j}, v{r+8+j}, v{r+12+j}")
        for j in range(4):
            a(f"v_add_f32 v{r+j}, v{r+j}, v{r+8+j}")
        for d in range(2):
            a(f"v_lshlrev_b32 v{r+4+2*d}, 16, v{xb+d}")
            a(f"v_and_b32 v{r+5+2*d}, 0xffff0000, v{xb+d}")
            a(f"v_lshlrev_b32 v{r+8+2*d}, 16, v{xb+2+d}")
            a(f"v_and_b32 v{r+9+2*d}, 0xffff0000, v{xb+2+d}")
        for j in range(4):
            a(f"v_add_f32 v{r+4+j}, v{r+4+j}, v{r+8+j}")
        for j in range(4):
            a(f"v_add_f32 v{r+j}, v{r+j}, v{MB+4*e+j}")
        for j in range(4):
            a(f"v_add_f32 v{r+j}, v{r+j}, v{r+4+j}")
        a(f"v_cvt_pk_bf16_f32 v{r+12}, v{r}, v{r+1}")
        a(f"v_cvt_pk_bf16_f32 v{r+13}, v{r+2}, v{r+3}")
        a(f"buffer_store_dwordx2 v[{r+12}:{r+13}], v7, s[24:27], 0 offen offset:{16*e}")
    a("s_waitcnt vmcnt(0)")
    stamp(a, 2); stamp_end(a, 3, 3)
    a.label("K3_END")
    a("s_endpgm")
    return a.text(), kernel_desc(name, FB + DEPTH*24, 102 if STAMP else 56), f"; @launch kernel={name} grid=(256,1,1) block=(256,1,1) lds={K3_LDS}"
```

```python
from asmlib import *
import math

LOG2E = 1.4426950408889634
QSCALE = (20 ** -0.5) * LOG2E
GC0 = -2.0 * math.sqrt(2.0/math.pi) * LOG2E
GC1 = GC0 * 0.044715

NKS = 10
LDS_B = 98304
K1_LDS = 98304 + 3*16384
NARRIVE = 30

def gen_side(a):
    a.label("K1_SIDE")
    a(f"""
    s_mov_b32 s34, s2                ; j
    s_cmp_ge_u32 s34, 16
    s_cbranch_scc1 K1_SIDE_CS
    s_mov_b32 s12, s50
    s_and_b32 s13, s51, 0xffff
    s_mov_b32 s14, {2048*1280}
    s_mov_b32 s15, 0x20000
    s_lshl_b32 s35, s34, 7
    s_lshl_b32 s36, s3, 4
    s_add_u32 s35, s35, s36
    v_lshrrev_b32 v3, 5, v1
    v_add_u32 v3, s35, v3
    v_and_b32 v4, 31, v1
    s_movk_i32 s36, 1280
    v_mul_lo_u32 v5, v3, s36
    v_lshl_add_u32 v5, v4, 3, v5     ; voff
    v_lshlrev_b32 v3, 2, v3
    """)
    L = 64
    for it in range(8):
        a(f"s_movk_i32 s37, {2560*it}")
        for j in range(5):
            a(f"buffer_load_dwordx2 v[{L+10*it+2*j}:{L+10*it+2*j+1}], v5, s[12:15], s37 offen offset:{256*j}")
    X = 20; T = 40
    def allreduce(r):
        for sh in (8,4,2,1):
            a("s_nop 1")
            a(f"v_add_f32_dpp v{r}, v{r}, v{r} row_ror:{sh} row_mask:0xf bank_mask:0xf")
        a(f"ds_swizzle_b32 v{T+9}, v{r} offset:0x401F")
        a("s_waitcnt lgkmcnt(0)")
        a(f"v_add_f32 v{r}, v{r}, v{T+9}")
    def rne(r):
        a(f"v_cvt_pk_bf16_f32 v{r}, v{r}, v{r}")
        a(f"v_lshlrev_b32 v{r}, 16, v{r}")
    a("v_cmp_eq_u32 s[40:41], 0, v4")
    for it in range(8):
        a(f"s_waitcnt vmcnt({5*(7-it) + 4*it})")
        for j in range(10):
            a(f"v_lshlrev_b32 v{X+2*j}, 16, v{L+10*it+j}")
            a(f"v_and_b32 v{X+2*j+1}, 0xffff0000, v{L+10*it+j}")
        S = T; M = T+1; A0 = T+2; A1 = T+3; R = T+4; D0 = T+5; D1 = T+6; MB = T+7; VV = T+8
        a(f"v_add_f32 v{S}, v{X}, v{X+1}")
        a(f"v_add_f32 v{A0}, v{X+2}, v{X+3}")
        for j in range(4, 20, 2):
            a(f"v_add_f32 v{S}, v{S}, v{X+j}")
            a(f"v_add_f32 v{A0}, v{A0}, v{X+j+1}")
        a(f"v_add_f32 v{S}, v{S}, v{A0}")
        allreduce(S)
        a(f"v_mul_f32 v{M}, 0x{f32bits(1.0/640):08x}, v{S}")
        a(f"v_mov_b32 v{A0}, 0")
        a(f"v_mov_b32 v{A1}, 0")
        for j in range(0, 20, 2):
            a(f"v_sub_f32 v{D0}, v{X+j}, v{M}")
            a(f"v_sub_f32 v{D1}, v{X+j+1}, v{M}")
            a(f"v_fmac_f32 v{A0}, v{D0}, v{D0}")
            a(f"v_fmac_f32 v{A1}, v{D1}, v{D1}")
        a(f"v_add_f32 v{A0}, v{A0}, v{A1}")
        allreduce(A0)
        a(f"v_mul_f32 v{VV}, 0x{f32bits(1.0/640):08x}, v{A0}")
        a(f"v_mov_b32 v{MB}, v{M}"); rne(MB)
        a(f"v_mov_b32 v{A0}, v{VV}"); rne(A0)
        a(f"v_add_f32 v{A0}, 0x{f32bits(1e-5):08x}, v{A0}"); rne(A0)
        a(f"v_sqrt_f32 v{A0}, v{A0}"); a("s_nop 0"); rne(A0)
        a(f"v_rcp_f32 v{R}, v{A0}"); a("s_nop 0")
        a(f"v_sub_f32 v{D0}, v{M}, v{MB}")
        a(f"v_mul_f32 v{D0}, v{D0}, v{R}"); rne(D0)
        a(f"v_mul_f32 v{D1}, v{VV}, v{R}")
        a(f"v_mul_f32 v{D1}, v{D1}, v{R}"); rne(D1)
        a(f"v_add_f32 v{D1}, 0x{f32bits(1e-5):08x}, v{D1}"); rne(D1)
        a(f"v_sqrt_f32 v{D1}, v{D1}"); a("s_nop 0"); rne(D1)
        a(f"v_rcp_f32 v{D1}, v{D1}"); a("s_nop 0")
        O = 50 + 4*(it % 2)
        a(f"v_mov_b32 v{O}, v{R}")
        a(f"v_mul_f32 v{O+1}, v{R}, v{MB}")
        a(f"v_mul_f32 v{O+2}, v{R}, v{D1}")
        a(f"v_add_f32 v{O+3}, v{O+1}, v{D0}")
        a(f"v_mul_f32 v{O+3}, v{O+3}, v{D1}")
        a(f"v_sub_f32 v{O+1}, 0, v{O+1}")
        a(f"v_sub_f32 v{O+3}, 0, v{O+3}")
        a("s_mov_b64 exec, s[40:41]")
        for q in range(4):
            a(f"s_mov_b32 s37, {WS_ST + 8192*q}")
            a(f"buffer_store_dword v{O+q}, v3, s[20:23], s37 offen offset:{8*it} sc1")
        a("s_mov_b64 exec, -1")
    a("s_branch K1_SIDE_ARRIVE")
    a.label("K1_SIDE_CS")
    a(f"""
    s_cmp_ge_u32 s34, 30
    s_cbranch_scc1 K1_SIDE_RELAYOUT
    s_sub_u32 s35, s34, 16
    s_lshl_b32 s35, s35, 1
    s_lshr_b32 s36, s3, 2            ; half
    s_add_u32 s35, s35, s36
    s_min_u32 s38, s35, 26
    s_cmp_lt_u32 s38, 15
    s_cselect_b32 s12, s4, s8
    s_cselect_b32 s13, s5, s9
    s_cselect_b32 s28, 3840, 3072
    s_cselect_b32 s37, 0, 15
    s_cselect_b32 s14, {640*3840}, {640*3072}
    s_and_b32 s13, s13, 0xffff
    s_mov_b32 s15, 0x20000
    s_sub_u32 s37, s38, s37
    s_lshl_b32 s37, s37, 8
    s_and_b32 s39, s3, 3
    s_lshl_b32 s39, s39, 2           ; (w%4)*4
    v_lshrrev_b32 v3, 4, v1
    v_add_u32 v3, s39, v3            ; rg (0..15)
    v_and_b32 v4, 15, v1             ; c
    s_mul_i32 s39, s28, 40
    v_mul_lo_u32 v5, v3, s39
    v_lshl_add_u32 v5, v4, 4, v5
    """)
    for r in range(8): a(f"v_mov_b32 v{20+r}, 0")
    for bt in range(2):
        for i in range(20):
            a(f"buffer_load_dwordx4 v[{64+4*i}:{67+4*i}], v5, s[12:15], s37 offen")
            a("s_add_u32 s37, s37, s28")
        for i in range(20):
            a(f"s_waitcnt vmcnt({19-i})")
            for d in range(4):
                a(f"v_lshlrev_b32 v30, 16, v{64+4*i+d}")
                a(f"v_and_b32 v31, 0xffff0000, v{64+4*i+d}")
                a(f"v_add_f32 v{20+2*d}, v{20+2*d}, v30")
                a(f"v_add_f32 v{21+2*d}, v{21+2*d}, v31")
    a(f"""
    s_lshl_b32 s39, s36, 13          ; half*8192
    v_lshlrev_b32 v6, 9, v3          ; rg*512
    v_lshl_add_u32 v6, v4, 5, v6     ; + c*32
    v_add_u32 v6, s39, v6
    ds_write_b128 v6, v[20:23]
    ds_write_b128 v6, v[24:27] offset:16
    s_waitcnt lgkmcnt(0)
    s_barrier
    ; waves (w%4)<2 of each half: column = (w%4)*64 + lane
    s_and_b32 s40, s3, 3
    s_cmp_ge_u32 s40, 2
    s_cbranch_scc1 K1_SIDE_ARRIVE
    s_lshl_b32 s40, s40, 6
    v_add_u32 v7, s40, v1
    v_lshlrev_b32 v8, 2, v7
    v_add_u32 v9, s39, v8
    """)
    for i in range(16):
        a(f"ds_read_b32 v{64+i}, v9 offset:{512*i}")
    a("s_waitcnt lgkmcnt(0)")
    for i in range(1, 16):
        a(f"v_add_f32 v64, v64, v{64+i}")
    a(f"""
    s_lshl_b32 s40, s38, 9           ; block*128*4
    s_add_u32 s40, s40, {WS_CS}
    buffer_store_dword v64, v8, s[20:23], s40 offen sc1
    """)
    a.label("K1_SIDE_ARRIVE")
    a(f"""
    s_waitcnt vmcnt(0)
    s_barrier
    s_cmp_lg_u32 s3, 0
    s_cbranch_scc1 K1_SIDE_RELAYOUT
    s_mov_b64 exec, 1
    v_mov_b32 v6, 0
    v_mov_b32 v7, 1
    global_atomic_add v6, v7, s[52:53] sc1
    s_mov_b64 exec, -1
    """)
    a.label("K1_SIDE_RELAYOUT")
    a(f"""
    s_lshl_b32 s35, s34, 3
    s_add_u32 s35, s35, s3           ; unit
    v_lshrrev_b32 v3, 5, v1          ; h
    v_and_b32 v4, 31, v1             ; n
    s_movk_i32 s24, {8*1280}
    v_mul_lo_u32 v3, v3, s24
    v_lshl_add_u32 v3, v4, 1, v3     ; h*8*1280 + n*2
    v_lshlrev_b32 v5, 4, v1
    v_add_u32 v6, 4096, v5
    K1_RL_LOOP:
    s_lshr_b32 s36, s35, 2           ; s
    s_and_b32 s37, s35, 3
    s_mul_i32 s37, s37, 5            ; t0
    s_cmp_lt_u32 s36, 40
    s_cselect_b32 s12, s54, s56
    s_cselect_b32 s13, s55, s57
    s_cselect_b32 s14, {640*1280}, {1536*1280}
    s_cselect_b32 s38, 0, 40
    s_and_b32 s13, s13, 0xffff
    s_mov_b32 s15, 0x20000
    s_sub_u32 s38, s36, s38
    s_mul_i32 s38, s38, {16*1280}
    s_lshl_b32 s39, s37, 6
    s_add_u32 s38, s38, s39
    """)
    for j in range(8):
        a(f"s_add_u32 s{24+j}, s38, {1280*j}")
    for tt in range(5):
        for j in range(8):
            a(f"buffer_load_ushort v{10+8*tt+j}, v3, s[12:15], s{24+j} offen offset:{64*tt}")
    a(f"""
    s_mul_i32 s38, s36, 20
    s_add_u32 s38, s38, s37
    s_lshl_b32 s38, s38, 10
    s_add_u32 s38, s38, {WS_WF}
    """)
    for tt in range(5):
        a(f"s_waitcnt vmcnt({8*(4-tt)+tt})")
        for d in range(4):
            a(f"v_lshl_or_b32 v{52+4*(tt%3)+d}, v{10+8*tt+2*d+1}, 16, v{10+8*tt+2*d}")
        r = 52+4*(tt%3)
        a(f"buffer_store_dwordx4 v[{r}:{r+3}], v5, s[20:23], s38 offen offset:{1024*tt}" if tt < 4 else
          f"buffer_store_dwordx4 v[{r}:{r+3}], v6, s[20:23], s38 offen")
    a(f"""
    s_waitcnt vmcnt(0)
    s_add_u32 s35, s35, 320
    s_cmp_lt_u32 s35, 544
    s_cbranch_scc1 K1_RL_LOOP
    s_endpgm
    """)

def gen_k1():
    a = Asm()
    name = "k1_gemm_kernel"
    a.lines.append(kernel_header(name))
    vDA = [4,5,6,7]; vDB = [8,9]
    vA = [10,11,12,13]; vA2 = [14,15,16,17]; vB = [18,19]
    FR = [20, 36]
    ACC = 64
    ST = 128
    def acc(mi, ni): return ACC + (mi*2+ni)*16
    a(f"""
    s_cmp_ge_u32 s2, 256
    s_cbranch_scc1 K1_END
    s_load_dwordx2 s[4:5], s[0:1], {KA_WQKV}
    s_load_dwordx2 s[6:7], s[0:1], {KA_WS}
    s_load_dwordx2 s[8:9], s[0:1], {KA_W1}
    s_load_dwordx2 s[10:11], s[0:1], {KA_B1}
    s_load_dwordx2 s[50:51], s[0:1], {KA_X}
    s_load_dwordx2 s[52:53], s[0:1], {KA_DBG}
    s_load_dwordx2 s[54:55], s[0:1], {KA_WO}
    s_load_dwordx2 s[56:57], s[0:1], {KA_W2}
    v_lshrrev_b32 v2, 6, v0
    v_and_b32 v1, 63, v0
    ; tile index T = (wg%8)*27 + wg/8 ; mh = T/108 ; rem = T%108 ; nt = rem/4 ; mt = mh*4 + rem%4
    s_and_b32 s38, s2, 7
    s_mul_i32 s38, s38, 27
    s_lshr_b32 s39, s2, 3
    s_sub_u32 s39, s39, 5            ; (wg-40)/8
    s_add_u32 s38, s38, s39
    s_cmp_ge_u32 s38, 108
    s_cselect_b32 s39, 108, 0
    s_cselect_b32 s34, 4, 0
    s_sub_u32 s38, s38, s39
    s_lshr_b32 s35, s38, 2           ; nt
    s_and_b32 s38, s38, 3
    s_add_u32 s34, s34, s38          ; mt
    v_readfirstlane_b32 s3, v2
    s_lshr_b32 s36, s3, 1            ; wm
    s_and_b32 s37, s3, 1             ; wn
    s_waitcnt lgkmcnt(0)
    """)
    stamp(a, 0)
    a(f"""
    s_mov_b32 s20, s6
    s_and_b32 s21, s7, 0xffff
    s_mov_b32 s22, {WS_END}
    s_mov_b32 s23, 0x20000
    s_cmp_lt_u32 s2, 40
    s_cbranch_scc1 K1_SIDE
    s_mul_i32 s39, s34, {256*1280}
    s_add_u32 s12, s50, s39
    s_addc_u32 s13, s51, 0
    s_and_b32 s13, s13, 0xffff
    s_mov_b32 s14, {256*1280}
    s_mov_b32 s15, 0x20000
    ; SRD_B s[16:19]
    s_cmp_lt_u32 s35, 15
    s_cselect_b32 s16, s4, s8
    s_cselect_b32 s17, s5, s9
    s_cselect_b32 s28, 3840, 3072
    s_cselect_b32 s38, 0, 15
    s_cselect_b32 s18, {640*3840}, {640*3072}
    s_sub_u32 s38, s35, s38
    s_lshl_b32 s39, s38, 8
    s_add_u32 s16, s16, s39
    s_addc_u32 s17, s17, 0
    s_and_b32 s17, s17, 0xffff
    s_sub_u32 s18, s18, s39
    s_mov_b32 s19, 0x20000
    s_lshl_b32 s31, s28, 6           ; 64*ldb
    s_lshl_b32 s32, s3, 12           ; w*4096
    s_lshl_b32 s33, s3, 11
    s_add_u32 s33, s33, {LDS_B}
    v_lshrrev_b32 v3, 5, v1          ; h
    """)
    a(f"""
    v_lshrrev_b32 v52, 3, v1         ; l/8
    v_and_b32 v53, 7, v1             ; c'
    v_lshrrev_b32 v54, 4, v1         ; l/16
    s_lshl_b32 s39, s3, 5            ; w*32 rows
    s_movk_i32 s40, 1280
    v_add_u32 v55, s39, v52
    v_mul_lo_u32 v55, v55, s40       ; row*1280 (i=0)
    v_xor_b32 v56, v53, v54          ; c (i even)
    v_xor_b32 v57, 4, v56            ; c (i odd)
    v_lshl_add_u32 v{vDA[0]}, v56, 4, v55
    v_lshl_add_u32 v{vDA[1]}, v57, 4, v55
    v_add_u32 v{vDA[1]}, {8*1280-1024}, v{vDA[1]}
    v_add_u32 v{vDA[2]}, {16*1280-2048}, v{vDA[0]}
    v_add_u32 v{vDA[3]}, {16*1280-2048}, v{vDA[1]}
    v_and_b32 v53, 15, v1            ; c' (0..15)
    v_lshlrev_b32 v56, 2, v54        ; (l/16)<<2
    v_xor_b32 v56, v53, v56          ; c
    s_lshl_b32 s39, s3, 3            ; w*8 krows
    v_add_u32 v55, s39, v54
    v_mul_lo_u32 v55, v55, s28
    v_lshl_add_u32 v{vDB[0]}, v56, 4, v55
    s_lshl_b32 s39, s28, 2
    s_sub_u32 s39, s39, 1024
    v_add_u32 v{vDB[1]}, s39, v{vDB[0]}
    s_mov_b32 s29, 0
    s_mov_b32 s30, 0
    """)
    def dma(ks):
        buf = ks % 3
        a(f"s_add_u32 m0, s32, {buf*32768}")
        a("s_nop 0")
        for i in range(4):
            a(f"buffer_load_dwordx4 v{vDA[i]}, s[12:15], s29 offen offset:{i*1024} lds")
        a(f"s_add_u32 m0, s33, {buf*16384}")
        a("s_add_u32 s29, s29, 128")
        for i in range(2):
            a(f"buffer_load_dwordx4 v{vDB[i]}, s[16:19], s30 offen offset:{i*1024} lds")
        a("s_add_u32 s30, s30, s31")
    dma(0); dma(1); dma(2)
    a(f"""
    v_and_b32 v52, 31, v1            ; r
    s_lshl_b32 s39, s36, 6           ; wm*64
    v_add_u32 v53, s39, v52
    v_lshlrev_b32 v53, 7, v53        ; row*128
    v_lshrrev_b32 v54, 1, v52
    v_and_b32 v54, 7, v54            ; f
    """)
    for s in range(4):
        a(f"""
        v_add_u32 v55, {2*s}, v3
        v_xor_b32 v55, v55, v54
        v_lshl_add_u32 v{vA[s]}, v55, 4, v53
        v_add_u32 v{vA2[s]}, 0x10000, v{vA[s]}
        """)
    a(f"""
    v_lshrrev_b32 v52, 4, v1         ; gq
    v_and_b32 v53, 15, v1            ; i
    v_lshrrev_b32 v54, 2, v53        ; i/4
    v_lshrrev_b32 v55, 1, v52        ; gq/2
    v_lshl_add_u32 v55, v55, 3, v54
    v_lshlrev_b32 v55, 8, v55        ; *256
    v_and_b32 v56, 1, v53
    v_lshl_add_u32 v55, v56, 3, v55  ; + (i%2)*8
    v_add_u32 v55, {LDS_B}, v55
    v_and_b32 v56, 1, v52            ; gq%2
    v_lshlrev_b32 v56, 1, v56
    v_bfe_u32 v57, v53, 1, 1         ; (i%4)/2
    v_add_u32 v56, v56, v57
    s_lshl_b32 s39, s37, 3           ; wn*8
    v_add_u32 v56, s39, v56
    v_lshlrev_b32 v54, 2, v54        ; (i/4)<<2
    """)
    for ni in range(2):
        a(f"""
        v_add_u32 v57, {ni*4}, v56
        v_xor_b32 v57, v57, v54
        v_lshl_add_u32 v{vB[ni]}, v57, 4, v55
        """)
    for r in range(64):
        a(f"v_mov_b32 v{ACC+r}, 0")
    a(f"""
    s_lshl_b32 s58, s34, 8
    s_lshl_b32 s39, s36, 6
    s_add_u32 s58, s58, s39
    s_lshl_b32 s58, s58, 2           ; token0*4
    s_lshl_b32 s59, s35, 7
    s_lshl_b32 s39, s37, 6
    s_add_u32 s59, s59, s39
    s_lshl_b32 s60, s59, 1
    s_lshl_b32 s59, s59, 2
    s_add_u32 s59, s59, {WS_CS}
    v_and_b32 v58, 31, v1
    v_lshlrev_b32 v58, 2, v58        ; (l%32)*4
    v_lshlrev_b32 v59, 4, v3         ; h*16
    v_lshlrev_b32 v60, 3, v3         ; h*8
    v_mov_b32 v61, 0
    s_mov_b32 s62, 0
    s_mov_b32 s24, s10
    s_and_b32 s25, s11, 0xffff
    s_mov_b32 s26, {1536*2}
    s_mov_b32 s27, 0x20000
    s_sub_u32 s60, s60, {1920*2}
    s_cmp_lt_u32 s35, 10
    s_cbranch_scc1 K1_MAIN_N
    s_cmp_ge_u32 s35, 15
    s_cbranch_scc1 K1_MAIN_N
    """)
    def reads(ks, s, p):
        buf = ks % 3
        va = vA[s] if buf < 2 else vA2[s]
        offA = buf*32768 if buf < 2 else 0
        F = FR[p]
        a(f"ds_read_b128 v[{F}:{F+3}], v{va} offset:{offA}")
        a(f"ds_read_b128 v[{F+4}:{F+7}], v{va} offset:{offA+4096}")
        for ni in range(2):
            for t in range(2):
                a(f"ds_read_b64_tr_b16 v[{F+8+4*ni+2*t}:{F+9+4*ni+2*t}], v{vB[ni]} offset:{buf*16384+s*4096+t*1024}")
    def mfmas(p, vmode):
        F = FR[p]
        for mi in range(2):
            for ni in range(2):
                A = f"v[{F+4*mi}:{F+4*mi+3}]"; B = f"v[{F+8+4*ni}:{F+8+4*ni+3}]"
                c = acc(mi, ni)
                if vmode: a(f"v_mfma_f32_32x32x16_bf16 v[{c}:{c+15}], {A}, {B}, v[{c}:{c+15}]")
                else:     a(f"v_mfma_f32_32x32x16_bf16 v[{c}:{c+15}], {B}, {A}, v[{c}:{c+15}]")
    def stat_loads(vmode):
        if vmode:
            for ni in range(2):
                a(f"buffer_load_dword v{ST+ni}, v58, s[20:23], s59 offen offset:{128*ni} sc1")
            a(f"s_add_u32 s61, s58, {WS_ST}")
            a(f"s_add_u32 s63, s58, {WS_ST+8192}")
            for mi in range(2):
                for g in range(4):
                    r = ST + 4 + 8*(mi*4+g)
                    a(f"buffer_load_dwordx4 v[{r}:{r+3}], v59, s[20:23], s61 offen offset:{128*mi+32*g} sc1")
                    a(f"buffer_load_dwordx4 v[{r+4}:{r+7}], v59, s[20:23], s63 offen offset:{128*mi+32*g} sc1")
        else:
            a(f"s_cmp_lt_u32 s35, 15")
            a(f"s_cselect_b32 s61, {WS_ST}, {WS_ST+16384}")
            a(f"s_add_u32 s61, s61, s58")
            a(f"s_add_u32 s63, s61, 8192")
            for mi in range(2):
                a(f"buffer_load_dword v{ST+2*mi}, v58, s[20:23], s61 offen offset:{128*mi} sc1")
                a(f"buffer_load_dword v{ST+2*mi+1}, v58, s[20:23], s63 offen offset:{128*mi} sc1")
            for ni in range(2):
                for g in range(4):
                    r = ST + 4 + 4*(ni*4+g)
                    a(f"buffer_load_dwordx4 v[{r}:{r+3}], v59, s[20:23], s59 offen offset:{128*ni+32*g} sc1")
            lb = a.newlabel("K1_NB")
            a(f"s_cmp_lt_u32 s35, 15")
            a(f"s_cbranch_scc1 {lb}")
            for ni in range(2):
                for g in range(4):
                    r = ST + 36 + 2*(ni*4+g)
                    a(f"buffer_load_dwordx2 v[{r}:{r+1}], v60, s[24:27], s60 offen offset:{64*ni+16*g}")
            a.label(lb)
    def mainloop(vmode):
        tag = "V" if vmode else "N"
        a("s_waitcnt vmcnt(12)")
        a("s_barrier")
        stamp(a, 1)
        reads(0, 0, 0)
        step = 0
        for ks in range(NKS):
            for s in range(4):
                p = step % 2
                if s < 3:
                    reads(ks, s+1, 1-p)
                    a("s_waitcnt lgkmcnt(6)")
                else:
                    if ks + 1 < NKS:
                        a(f"s_waitcnt vmcnt({6 if ks+2 < NKS else 0}) lgkmcnt(0)")
                        a("s_barrier")
                        if ks + 3 < NKS: dma(ks+3)
                        if ks == 7:
                            a(f"global_load_dword v62, v61, s[52:53] sc1")
                        if ks == 8:
                            a(f"v_readfirstlane_b32 s39, v62")
                            a(f"s_cmp_lt_u32 s39, {NARRIVE}")
                            a(f"s_cbranch_scc1 K1_NOTREADY_{tag}")
                            stat_loads(vmode)
                            a("s_mov_b32 s62, 1")
                            a.label(f"K1_NOTREADY_{tag}")
                        reads(ks+1, 0, 1-p)
                    else:
                        a("s_waitcnt lgkmcnt(0)")
                mfmas(p, vmode)
                step += 1
                if s == 3 and ks in (0, 4): stamp(a, 2 + ks//4)
        a(f"""
        s_cmp_lg_u32 s62, 0
        s_cbranch_scc1 K1_READY_{tag}
        s_mov_b32 s40, 0
        K1_SPIN_{tag}:
        global_load_dword v62, v61, s[52:53] sc1
        s_waitcnt vmcnt(0)
        v_readfirstlane_b32 s39, v62
        s_cmp_ge_u32 s39, {NARRIVE}
        s_cbranch_scc1 K1_SPINDONE_{tag}
        s_sleep 8
        s_add_u32 s40, s40, 1
        s_cmp_lt_u32 s40, 0x40000
        s_cbranch_scc1 K1_SPIN_{tag}
        K1_SPINDONE_{tag}:
        """)
        stat_loads(vmode)
        a.label(f"K1_READY_{tag}")
        a("s_nop 7")
        a("s_waitcnt vmcnt(0)")
        stamp(a, 4)
    a.label("K1_MAIN_V")
    mainloop(True)
    a(f"""
    v_and_b32 v52, 31, v1
    s_sub_u32 s39, s35, 10
    s_lshl_b32 s39, s39, 7           ; (nt-10)*128
    s_lshl_b32 s40, s37, 6
    s_add_u32 s39, s39, s40          ; + wn*64
    v_add_u32 v52, s39, v52
    s_lshl_b32 s40, s34, 3
    s_lshl_b32 s41, s36, 1
    s_add_u32 s40, s40, s41
    s_mul_i32 s40, s40, 2560
    s_add_u32 s40, s40, {WS_KV + 1280}
    s_add_u32 s41, s40, 2560         ; mi=1
    s_movk_i32 s42, 3277
    s_mov_b32 s43, {163840}
    v_mul_u32_u24 v53, 20, v3        ; h*20
    """)
    for ni in range(2):
        a(f"""
        v_add_u32 v54, {ni*32}, v52
        v_mul_u32_u24 v55, s42, v54
        v_lshrrev_b32 v55, 16, v55       ; head
        v_mul_u32_u24 v56, 20, v55
        v_sub_u32 v56, v54, v56          ; d
        v_add_u32 v56, v56, v53          ; h*20+d
        v_mul_lo_u32 v55, v55, s43
        v_lshl_add_u32 v{58+ni}, v56, 4, v55
        """)
    t = FR[0]
    k = 0
    for mi in range(2):
        for ni in range(2):
            c = acc(mi, ni)
            for g in range(4):
                r = ST + 4 + 8*(mi*4+g)
                for j in range(4):
                    a(f"v_mul_f32 v{52+j}, v{r+4+j}, v{ST+ni}")
                for j in range(4):
                    a(f"v_fma_f32 v{c+4*g+j}, v{c+4*g+j}, v{r+j}, v{52+j}")
            for pv in range(2):
                r = t + 4*(k % 8); k += 1
                for d in range(4):
                    a(f"v_cvt_pk_bf16_f32 v{r+d}, v{c+8*pv+2*d}, v{c+8*pv+2*d+1}")
                a(f"buffer_store_dwordx4 v[{r}:{r+3}], v{58+ni}, s[20:23], s{40+mi} offen offset:{pv*640}")
    if STAMP:
        a("s_waitcnt vmcnt(0)")
        stamp(a, 5); stamp_end(a, 1, 6)
    a("s_endpgm")
    a.label("K1_MAIN_N")
    mainloop(False)
    a(f"""
    s_cmp_ge_u32 s35, 15
    s_cbranch_scc1 K1_EPI_H
    """)
    a(f"""
    s_cmp_lt_u32 s35, 5
    s_cselect_b32 s39, 0, 5
    s_cselect_b32 s43, {81920}, {163840}
    s_cselect_b32 s44, 1280, 2560
    s_cselect_b32 s45, {WS_QF}, {WS_KV}
    s_cselect_b32 s46, 0x{f32bits(QSCALE):08x}, 0x3f800000
    s_sub_u32 s39, s35, s39
    s_lshl_b32 s39, s39, 7
    s_lshl_b32 s40, s37, 6
    s_add_u32 s39, s39, s40
    v_lshlrev_b32 v52, 2, v3
    v_add_u32 v52, s39, v52          ; + 4h
    s_lshl_b32 s40, s34, 3
    s_lshl_b32 s41, s36, 1
    s_add_u32 s40, s40, s41
    s_mul_i32 s40, s40, s44
    s_add_u32 s40, s40, s45
    s_add_u32 s41, s40, s44          ; mi=1
    s_movk_i32 s42, 3277
    v_and_b32 v53, 31, v1            ; key
    v_lshlrev_b32 v54, 4, v53        ; key*16
    v_lshlrev_b32 v53, 3, v53        ; key*8
    v_add_u32 v53, 1024, v53         ; 1024 + key*8
    """)
    for q in range(4):
        a(f"v_mul_f32 v{ST+q}, s46, v{ST+q}")
    k = 0
    for ni in range(2):
        for g in range(4):
            a(f"""
            v_add_u32 v55, {ni*32+8*g}, v52      ; n'
            v_mul_u32_u24 v56, s42, v55
            v_lshrrev_b32 v56, 16, v56           ; head
            v_mul_u32_u24 v57, 20, v56
            v_sub_u32 v57, v55, v57              ; d
            v_lshrrev_b32 v58, 3, v57            ; d/8
            v_lshl_add_u32 v58, v58, 9, v54      ; (d/8)*512 + key*16
            v_and_b32 v59, 7, v57
            v_lshl_add_u32 v58, v59, 1, v58      ; + (d%8)*2
            v_cmp_gt_u32 vcc, 16, v57
            v_mul_lo_u32 v56, v56, s43
            s_nop 0
            v_cndmask_b32 v58, v53, v58, vcc
            v_add_u32 v58, v58, v56
            """)
            cs = ST + 4 + 4*(ni*4+g)
            for mi in range(2):
                c = acc(mi, ni) + 4*g
                r = FR[0] + 2*(k % 16); k += 1
                for j in range(4):
                    a(f"v_mul_f32 v{60+j}, v{ST+2*mi+1}, v{cs+j}")
                for j in range(4):
                    a(f"v_fma_f32 v{c+j}, v{c+j}, v{ST+2*mi}, v{60+j}")
                a(f"v_cvt_pk_bf16_f32 v{r}, v{c}, v{c+1}")
                a(f"v_cvt_pk_bf16_f32 v{r+1}, v{c+2}, v{c+3}")
                a(f"buffer_store_dwordx2 v[{r}:{r+1}], v58, s[20:23], s{40+mi} offen")
    if STAMP:
        a("s_waitcnt vmcnt(0)")
        stamp(a, 5); stamp_end(a, 1, 6)
    a("s_endpgm")
    a.label("K1_EPI_H")
    a(f"""
    v_and_b32 v52, 31, v1
    v_lshlrev_b32 v52, 4, v52
    v_lshl_add_u32 v52, v3, 3, v52   ; key*16 + h*8
    s_lshl_b32 s40, s34, 3
    s_lshl_b32 s41, s36, 1
    s_add_u32 s40, s40, s41
    s_mul_i32 s40, s40, {136*1024}
    s_sub_u32 s39, s35, 15
    s_lshl_b32 s39, s39, 3
    s_lshl_b32 s41, s37, 2
    s_add_u32 s39, s39, s41
    s_add_u32 s39, s39, 40
    s_lshl_b32 s39, s39, 10
    s_add_u32 s40, s40, s39
    s_add_u32 s40, s40, {WS_AF}
    s_add_u32 s41, s40, {136*1024}
    v_mov_b32 v53, 0x{f32bits(GC1):08x}
    """)
    k = 0
    BI = ST + 52
    for ni in range(2):
        for g in range(4):
            cs = ST + 4 + 4*(ni*4+g)
            br = ST + 36 + 2*(ni*4+g)
            for d in range(2):
                a(f"v_lshlrev_b32 v{BI+2*d}, 16, v{br+d}")
                a(f"v_and_b32 v{BI+2*d+1}, 0xffff0000, v{br+d}")
            for mi in range(2):
                c = acc(mi, ni) + 4*g
                T = 54
                for j in range(4): a(f"v_fma_f32 v{T+4+j}, v{ST+2*mi+1}, v{cs+j}, v{BI+j}")
                for j in range(4): a(f"v_fma_f32 v{c+j}, v{c+j}, v{ST+2*mi}, v{T+4+j}")
                for j in range(4): a(f"v_mul_f32 v{T+j}, v{c+j}, v{c+j}")
                for j in range(4): a(f"v_fmaak_f32 v{T+j}, v{T+j}, v53, 0x{f32bits(GC0):08x}")
                for j in range(4): a(f"v_mul_f32 v{T+j}, v{T+j}, v{c+j}")
                for j in range(4): a(f"v_exp_f32 v{T+j}, v{T+j}")
                for j in range(4): a(f"v_add_f32 v{T+j}, 1.0, v{T+j}")
                for j in range(4): a(f"v_rcp_f32 v{T+j}, v{T+j}")
                for j in range(4): a(f"v_mul_f32 v{T+j}, v{T+j}, v{c+j}")
                r = FR[0] + 2*(k % 16); k += 1
                a(f"v_cvt_pk_bf16_f32 v{r}, v{T}, v{T+1}")
                a(f"v_cvt_pk_bf16_f32 v{r+1}, v{T+2}, v{T+3}")
                a(f"buffer_store_dwordx2 v[{r}:{r+1}], v52, s[20:23], s{40+mi} offen offset:{(g%2)*512 + (ni*2+g//2)*1024}")
    if STAMP:
        a("s_waitcnt vmcnt(0)")
        stamp(a, 5); stamp_end(a, 1, 6)
    a.label("K1_END")
    a("s_endpgm")
    gen_side(a)
    return a.text(), kernel_desc(name, 200, 102 if STAMP else 72), f"; @launch kernel={name} grid=(256,1,1) block=(512,1,1) lds={K1_LDS}"
```

```python
from asmlib import *
import math

LOG2E = 1.4426950408889634
QSCALE = (20 ** -0.5) * LOG2E
GC0 = -2.0 * math.sqrt(2.0/math.pi) * LOG2E
GC1 = GC0 * 0.044715

NKS = 10
LDS_B = 98304
K1_LDS = 98304 + 3*16384
NARRIVE = 40

def gen_side(a):
    a.label("K1_SIDE")
    a(f"""
    s_mov_b32 s34, s2                ; j
    s_mul_i32 s35, s3, 40
    s_add_u32 s35, s35, s34
    s_cmp_lt_u32 s35, 108
    s_cbranch_scc1 K1_SIDE_CS
    s_sub_u32 s35, s35, 108          ; RW
    s_mov_b32 s12, s50
    s_and_b32 s13, s51, 0xffff
    s_mov_b32 s14, {2048*1280}
    s_mov_b32 s15, 0x20000
    s_lshl_b32 s36, s35, 1
    v_lshrrev_b32 v3, 5, v1
    v_add_u32 v3, s36, v3
    v_and_b32 v4, 31, v1
    s_movk_i32 s36, 1280
    v_mul_lo_u32 v5, v3, s36
    v_lshl_add_u32 v5, v4, 3, v5     ; voff
    v_lshlrev_b32 v3, 2, v3
    """)
    L = 64
    NIT = 5
    for it in range(NIT):
        a(f"s_mov_b32 s37, {424*1280*it}")
        for j in range(5):
            a(f"buffer_load_dwordx2 v[{L+10*it+2*j}:{L+10*it+2*j+1}], v5, s[12:15], s37 offen offset:{256*j}")
    X = 20; T = 40
    def allreduce(r):
        for sh in (8,4,2,1):
            a("s_nop 1")
            a(f"v_add_f32_dpp v{r}, v{r}, v{r} row_ror:{sh} row_mask:0xf bank_mask:0xf")
        a(f"ds_swizzle_b32 v{T+9}, v{r} offset:0x401F")
        a("s_waitcnt lgkmcnt(0)")
        a(f"v_add_f32 v{r}, v{r}, v{T+9}")
    def rne(r):
        a(f"v_cvt_pk_bf16_f32 v{r}, v{r}, v{r}")
        a(f"v_lshlrev_b32 v{r}, 16, v{r}")
    a("v_mov_b32 v6, 0x3f803f80")
    for it in range(NIT):
        a(f"v_mov_b32 v{20+it}, 0")
        a(f"v_mov_b32 v{26+it}, 0")
    for it in range(NIT):
        a(f"s_waitcnt vmcnt({5*(NIT-1-it)})")
        for j_ in range(10):
            a(f"v_dot2_f32_bf16 v{20+it}, v{L+10*it+j_}, v6, v{20+it}")
            a(f"v_dot2_f32_bf16 v{26+it}, v{L+10*it+j_}, v{L+10*it+j_}, v{26+it}")
    regs = [20+it for it in range(NIT)] + [26+it for it in range(NIT)]
    a("s_nop 3")
    for sh in (8,4,2,1):
        for r in regs:
            a(f"v_add_f32_dpp v{r}, v{r}, v{r} row_ror:{sh} row_mask:0xf bank_mask:0xf")
    for k_, r in enumerate(regs):
        a(f"ds_swizzle_b32 v{32+k_}, v{r} offset:0x401F")
    a("s_waitcnt lgkmcnt(0)")
    for k_, r in enumerate(regs):
        a(f"v_add_f32 v{r}, v{r}, v{32+k_}")
    S = T; M = T+1; A0 = T+2; A1 = T+3; R = T+4; D0 = T+5; D1 = T+6; MB = T+7; VV = T+8
    a(f"v_mov_b32 v{S}, v20")
    a(f"v_mov_b32 v{A0}, v26")
    for it in range(1, NIT):
        a(f"v_cmp_eq_u32 vcc, {it}, v4")
        a("s_nop 1")
        a(f"v_cndmask_b32 v{S}, v{S}, v{20+it}, vcc")
        a(f"v_cndmask_b32 v{A0}, v{A0}, v{26+it}, vcc")
    a(f"v_mul_f32 v{M}, 0x{f32bits(1.0/640):08x}, v{S}")
    a(f"v_mul_f32 v{A0}, 0x{f32bits(1.0/640):08x}, v{A0}")
    a(f"v_fma_f32 v{VV}, -v{M}, v{M}, v{A0}")
    a(f"v_max_f32 v{VV}, 0, v{VV}")
    a(f"v_mov_b32 v{MB}, v{M}"); rne(MB)
    a(f"v_mov_b32 v{A0}, v{VV}"); rne(A0)
    a(f"v_add_f32 v{A0}, 0x{f32bits(1e-5):08x}, v{A0}"); rne(A0)
    a(f"v_sqrt_f32 v{A0}, v{A0}"); a("s_nop 0"); rne(A0)
    a(f"v_rcp_f32 v{R}, v{A0}"); a("s_nop 0")
    a(f"v_sub_f32 v{D0}, v{M}, v{MB}")
    a(f"v_mul_f32 v{D0}, v{D0}, v{R}"); rne(D0)
    a(f"v_mul_f32 v{D1}, v{VV}, v{R}")
    a(f"v_mul_f32 v{D1}, v{D1}, v{R}"); rne(D1)
    a(f"v_add_f32 v{D1}, 0x{f32bits(1e-5):08x}, v{D1}"); rne(D1)
    a(f"v_sqrt_f32 v{D1}, v{D1}"); a("s_nop 0"); rne(D1)
    a(f"v_rcp_f32 v{D1}, v{D1}"); a("s_nop 0")
    O = 50
    a(f"v_mov_b32 v{O}, v{R}")
    a(f"v_mul_f32 v{O+1}, v{R}, v{MB}")
    a(f"v_mul_f32 v{O+2}, v{R}, v{D1}")
    a(f"v_add_f32 v{O+3}, v{O+1}, v{D0}")
    a(f"v_mul_f32 v{O+3}, v{O+3}, v{D1}")
    a(f"v_sub_f32 v{O+1}, 0, v{O+1}")
    a(f"v_sub_f32 v{O+3}, 0, v{O+3}")
    a(f"v_mul_u32_u24 v7, {424*4}, v4")
    a(f"v_add_u32 v7, v7, v3")
    a(f"v_cmp_gt_u32 s[40:41], {NIT}, v4")
    a(f"v_cmp_gt_u32 vcc, {2048*4}, v7")
    a("s_and_b64 s[40:41], s[40:41], vcc")
    a("s_mov_b64 exec, s[40:41]")
    for q in range(4):
        a(f"s_mov_b32 s37, {WS_ST + 8192*q}")
        a(f"buffer_store_dword v{O+q}, v7, s[20:23], s37 offen sc1")
    a("s_mov_b64 exec, -1")
    a("s_branch K1_SIDE_ARRIVE")
    a.label("K1_SIDE_CS")
    a(f"""
    s_cmp_lt_u32 s35, 60
    s_cselect_b32 s12, s4, s8
    s_cselect_b32 s13, s5, s9
    s_cselect_b32 s28, 3840, 3072
    s_cselect_b32 s37, 0, 60
    s_cselect_b32 s14, {640*3840}, {640*3072}
    s_and_b32 s13, s13, 0xffff
    s_mov_b32 s15, 0x20000
    s_sub_u32 s37, s35, s37
    s_lshl_b32 s37, s37, 6
    v_lshrrev_b32 v3, 2, v1          ; rg
    v_and_b32 v4, 3, v1              ; c
    s_mul_i32 s39, s28, 40
    v_mul_lo_u32 v5, v3, s39
    v_lshl_add_u32 v5, v4, 4, v5
    """)
    for r in range(8): a(f"v_mov_b32 v{20+r}, 0")
    for i in range(32):
        a(f"buffer_load_dwordx4 v[{64+4*i}:{67+4*i}], v5, s[12:15], s37 offen")
        a("s_add_u32 s37, s37, s28")
    for i in range(40):
        a(f"s_waitcnt vmcnt({min(31, 39-i)})")
        for d in range(4):
            a(f"v_lshlrev_b32 v30, 16, v{64+4*(i%32)+d}")
            a(f"v_and_b32 v31, 0xffff0000, v{64+4*(i%32)+d}")
            a(f"v_add_f32 v{20+2*d}, v{20+2*d}, v30")
            a(f"v_add_f32 v{21+2*d}, v{21+2*d}, v31")
        if i < 8:
            a(f"buffer_load_dwordx4 v[{64+4*i}:{67+4*i}], v5, s[12:15], s37 offen")
            a("s_add_u32 s37, s37, s28")
    a("s_nop 1")
    for sh in (4, 8):
        for r in range(8):
            a(f"v_add_f32_dpp v{20+r}, v{20+r}, v{20+r} row_ror:{sh} row_mask:0xf bank_mask:0xf")
        a("s_nop 1")
    for r in range(8):
        a(f"ds_swizzle_b32 v{30+r}, v{20+r} offset:0x401F")
    a("s_waitcnt lgkmcnt(0)")
    for r in range(8):
        a(f"v_add_f32 v{20+r}, v{20+r}, v{30+r}")
    for r in range(8):
        a(f"v_mov_b32 v{30+r}, v{20+r}")
    a("s_nop 1")
    for r in range(8):
        a(f"v_permlane32_swap_b32 v{20+r}, v{30+r}")
    a("s_nop 1")
    for r in range(8):
        a(f"v_add_f32 v{20+r}, v{20+r}, v{30+r}")
    a(f"""
    s_lshl_b32 s40, s35, 7           ; unit*32*4
    s_add_u32 s40, s40, {WS_CS}
    v_lshlrev_b32 v8, 5, v4          ; c*32
    s_mov_b64 exec, 15
    buffer_store_dwordx4 v[20:23], v8, s[20:23], s40 offen sc1
    buffer_store_dwordx4 v[24:27], v8, s[20:23], s40 offen offset:16 sc1
    s_mov_b64 exec, -1
    """)
    a.label("K1_SIDE_ARRIVE")
    stamp(a, 1)
    a(f"""
    s_waitcnt vmcnt(0)
    s_barrier
    """)
    stamp(a, 2)
    a(f"""
    s_cmp_lg_u32 s3, 0
    s_cbranch_scc1 K1_SIDE_RELAYOUT
    s_mov_b64 exec, 1
    v_mov_b32 v6, 0
    v_mov_b32 v7, 1
    global_atomic_add v6, v7, s[52:53] sc1
    s_mov_b64 exec, -1
    """)
    a.label("K1_SIDE_RELAYOUT")
    a(f"""
    s_lshl_b32 s35, s34, 3
    s_add_u32 s35, s35, s3           ; unit
    v_lshrrev_b32 v3, 5, v1          ; h
    v_and_b32 v4, 31, v1             ; n
    s_movk_i32 s24, {8*1280}
    v_mul_lo_u32 v3, v3, s24
    v_lshl_add_u32 v3, v4, 1, v3     ; h*8*1280 + n*2
    v_lshlrev_b32 v5, 4, v1
    v_add_u32 v6, 4096, v5
    K1_RL_LOOP:
    s_lshr_b32 s36, s35, 2           ; s
    s_and_b32 s37, s35, 3
    s_mul_i32 s37, s37, 5            ; t0
    s_cmp_lt_u32 s36, 40
    s_cselect_b32 s12, s54, s56
    s_cselect_b32 s13, s55, s57
    s_cselect_b32 s14, {640*1280}, {1536*1280}
    s_cselect_b32 s38, 0, 40
    s_and_b32 s13, s13, 0xffff
    s_mov_b32 s15, 0x20000
    s_sub_u32 s38, s36, s38
    s_mul_i32 s38, s38, {16*1280}
    s_lshl_b32 s39, s37, 6
    s_add_u32 s38, s38, s39
    """)
    for j in range(8):
        a(f"s_add_u32 s{24+j}, s38, {1280*j}")
    for tt in range(5):
        for j in range(8):
            a(f"buffer_load_ushort v{10+8*tt+j}, v3, s[12:15], s{24+j} offen offset:{64*tt}")
    a(f"""
    s_mul_i32 s38, s36, 20
    s_add_u32 s38, s38, s37
    s_lshl_b32 s38, s38, 10
    s_add_u32 s38, s38, {WS_WF}
    """)
    for tt in range(5):
        a(f"s_waitcnt vmcnt({8*(4-tt)+tt})")
        for d in range(4):
            a(f"v_lshl_or_b32 v{52+4*(tt%3)+d}, v{10+8*tt+2*d+1}, 16, v{10+8*tt+2*d}")
        r = 52+4*(tt%3)
        a(f"buffer_store_dwordx4 v[{r}:{r+3}], v5, s[20:23], s38 offen offset:{1024*tt}" if tt < 4 else
          f"buffer_store_dwordx4 v[{r}:{r+3}], v6, s[20:23], s38 offen")
    a(f"""
    s_waitcnt vmcnt(0)
    s_add_u32 s35, s35, 320
    s_cmp_lt_u32 s35, 544
    s_cbranch_scc1 K1_RL_LOOP
    """)
    stamp(a, 3); stamp_end(a, 0, 4)
    a("s_endpgm")

def gen_k1():
    a = Asm()
    name = "k1_gemm_kernel"
    a.lines.append(kernel_header(name))
    vDA = [4,5,6,7]; vDB = [8,9]
    vA = [10,11,12,13]; vA2 = [14,15,16,17]; vB = [18,19]
    FR = [20, 36]
    ACC = 64
    ST = 128
    def acc(mi, ni): return ACC + (mi*2+ni)*16
    a(f"""
    s_cmp_ge_u32 s2, 256
    s_cbranch_scc1 K1_END
    s_load_dwordx2 s[4:5], s[0:1], {KA_WQKV}
    s_load_dwordx2 s[6:7], s[0:1], {KA_WS}
    s_load_dwordx2 s[8:9], s[0:1], {KA_W1}
    s_load_dwordx2 s[10:11], s[0:1], {KA_B1}
    s_load_dwordx2 s[50:51], s[0:1], {KA_X}
    s_load_dwordx2 s[52:53], s[0:1], {KA_DBG}
    s_load_dwordx2 s[54:55], s[0:1], {KA_WO}
    s_load_dwordx2 s[56:57], s[0:1], {KA_W2}
    v_lshrrev_b32 v2, 6, v0
    v_and_b32 v1, 63, v0
    ; tile index T = (wg%8)*27 + wg/8 ; mh = T/108 ; rem = T%108 ; nt = rem/4 ; mt = mh*4 + rem%4
    s_and_b32 s38, s2, 7
    s_mul_i32 s38, s38, 27
    s_lshr_b32 s39, s2, 3
    s_sub_u32 s39, s39, 5            ; (wg-40)/8
    s_add_u32 s38, s38, s39
    s_cmp_ge_u32 s38, 108
    s_cselect_b32 s39, 108, 0
    s_cselect_b32 s34, 4, 0
    s_sub_u32 s38, s38, s39
    s_lshr_b32 s35, s38, 2           ; nt
    s_and_b32 s38, s38, 3
    s_add_u32 s34, s34, s38          ; mt
    v_readfirstlane_b32 s3, v2
    s_and_b32 s36, s3, 3             ; wm
    s_lshr_b32 s37, s3, 2            ; wn
    s_waitcnt lgkmcnt(0)
    """)
    stamp(a, 0)
    a(f"""
    s_mov_b32 s20, s6
    s_and_b32 s21, s7, 0xffff
    s_mov_b32 s22, {WS_END}
    s_mov_b32 s23, 0x20000
    s_cmp_lt_u32 s2, 40
    s_cbranch_scc1 K1_SIDE
    s_mul_i32 s39, s34, {256*1280}
    s_add_u32 s12, s50, s39
    s_addc_u32 s13, s51, 0
    s_and_b32 s13, s13, 0xffff
    s_mov_b32 s14, {256*1280}
    s_mov_b32 s15, 0x20000
    s_cmp_lt_u32 s35, 24
    s_cselect_b32 s64, s37, 0
    s_sub_u32 s39, s35, 24
    s_lshl_b32 s39, s39, 1
    s_add_u32 s39, s39, 24
    s_add_u32 s39, s39, s37
    s_cmp_lt_u32 s35, 24
    s_cselect_b32 s65, s35, s39
    ; SRD_B s[16:19]
    s_cmp_eq_u32 s64, 0
    s_cselect_b32 s16, s4, s8
    s_cselect_b32 s17, s5, s9
    s_cselect_b32 s28, 3840, 3072
    s_cselect_b32 s18, {640*3840}, {640*3072}
    s_cselect_b32 s66, 0, 1920
    s_lshl_b32 s39, s65, 7
    s_add_u32 s16, s16, s39
    s_addc_u32 s17, s17, 0
    s_and_b32 s17, s17, 0xffff
    s_sub_u32 s18, s18, s39
    s_mov_b32 s19, 0x20000
    s_lshl_b32 s39, s65, 6
    s_add_u32 s66, s66, s39
    s_lshl_b32 s31, s28, 6           ; 64*ldb
    s_lshl_b32 s32, s3, 12           ; w*4096
    s_lshl_b32 s33, s3, 11
    s_add_u32 s33, s33, {LDS_B}
    v_lshrrev_b32 v3, 5, v1          ; h
    """)
    a(f"""
    v_lshrrev_b32 v52, 3, v1         ; l/8
    v_and_b32 v53, 7, v1             ; c'
    v_lshrrev_b32 v54, 4, v1         ; l/16
    s_lshl_b32 s39, s3, 5            ; w*32 rows
    s_movk_i32 s40, 1280
    v_add_u32 v55, s39, v52
    v_mul_lo_u32 v55, v55, s40       ; row*1280 (i=0)
    v_xor_b32 v56, v53, v54          ; c (i even)
    v_xor_b32 v57, 4, v56            ; c (i odd)
    v_lshl_add_u32 v{vDA[0]}, v56, 4, v55
    v_lshl_add_u32 v{vDA[1]}, v57, 4, v55
    v_add_u32 v{vDA[1]}, {8*1280-1024}, v{vDA[1]}
    v_add_u32 v{vDA[2]}, {16*1280-2048}, v{vDA[0]}
    v_add_u32 v{vDA[3]}, {16*1280-2048}, v{vDA[1]}
    v_and_b32 v56, 1, v54            ; (l/16)&1
    v_lshlrev_b32 v56, 2, v56
    v_xor_b32 v56, v53, v56          ; c
    s_lshl_b32 s39, s36, 4           ; (w&3)*16 krows
    v_add_u32 v55, s39, v52          ; + l/8
    v_mul_lo_u32 v55, v55, s28
    v_lshl_add_u32 v{vDB[0]}, v56, 4, v55
    s_lshl_b32 s39, s28, 3
    s_sub_u32 s39, s39, 1024
    v_add_u32 v{vDB[1]}, s39, v{vDB[0]}
    s_mov_b32 s29, 0
    s_mov_b32 s30, 0
    """)
    def dma_piece(ks, piece):
        buf = ks % 3
        if piece < 2:
            a(f"s_add_u32 m0, s32, {buf*32768}")
            a("s_nop 0")
            for i in (2*piece, 2*piece+1):
                a(f"buffer_load_dwordx4 v{vDA[i]}, s[12:15], s29 offen offset:{i*1024} lds")
            if piece == 1: a("s_add_u32 s29, s29, 128")
        else:
            a(f"s_add_u32 m0, s33, {buf*16384}")
            a("s_nop 0")
            for i in range(2):
                a(f"buffer_load_dwordx4 v{vDB[i]}, s[16:19], s30 offen offset:{i*1024} lds")
            a("s_add_u32 s30, s30, s31")
    def dma(ks):
        for p_ in range(3): dma_piece(ks, p_)
    dma(0)
    stamp(a, 8)
    a("s_barrier")
    stamp(a, 9)
    dma(1)
    a(f"""
    v_and_b32 v52, 31, v1            ; r
    s_lshl_b32 s39, s36, 6           ; wm*64
    v_add_u32 v53, s39, v52
    v_lshlrev_b32 v53, 7, v53        ; row*128
    v_lshrrev_b32 v54, 1, v52
    v_and_b32 v54, 7, v54            ; f
    """)
    for s in range(4):
        a(f"""
        v_add_u32 v55, {2*s}, v3
        v_xor_b32 v55, v55, v54
        v_lshl_add_u32 v{vA[s]}, v55, 4, v53
        v_add_u32 v{vA2[s]}, 0x10000, v{vA[s]}
        """)
    a(f"""
    v_lshrrev_b32 v52, 4, v1         ; gq
    v_and_b32 v53, 15, v1            ; i
    v_lshrrev_b32 v54, 2, v53        ; i/4
    v_lshrrev_b32 v55, 1, v52        ; gq/2
    v_lshl_add_u32 v55, v55, 3, v54
    v_lshlrev_b32 v55, 7, v55        ; *128
    v_and_b32 v56, 1, v53
    v_lshl_add_u32 v55, v56, 3, v55  ; + (i%2)*8
    s_lshl_b32 s39, s37, 13          ; wn*8192
    s_add_u32 s39, s39, {LDS_B}
    v_add_u32 v55, s39, v55
    v_and_b32 v56, 1, v52            ; gq%2
    v_lshlrev_b32 v56, 1, v56
    v_bfe_u32 v57, v53, 1, 1         ; (i%4)/2
    v_add_u32 v56, v56, v57
    v_bfe_u32 v54, v53, 3, 1
    v_lshlrev_b32 v54, 2, v54        ; ((i>>3)&1)<<2
    """)
    for ni in range(2):
        a(f"""
        v_add_u32 v57, {ni*4}, v56
        v_xor_b32 v57, v57, v54
        v_lshl_add_u32 v{vB[ni]}, v57, 4, v55
        """)
    for r in range(64):
        a(f"v_mov_b32 v{ACC+r}, 0")
    a(f"""
    s_lshl_b32 s58, s34, 8
    s_lshl_b32 s39, s36, 6
    s_add_u32 s58, s58, s39
    s_lshl_b32 s58, s58, 2           ; token0*4
    s_lshl_b32 s60, s66, 1
    s_lshl_b32 s59, s66, 2
    s_add_u32 s59, s59, {WS_CS}
    v_and_b32 v58, 31, v1
    v_lshlrev_b32 v58, 2, v58        ; (l%32)*4
    v_lshlrev_b32 v59, 4, v3         ; h*16
    v_lshlrev_b32 v60, 3, v3         ; h*8
    v_mov_b32 v61, 0
    s_mov_b32 s62, 0
    s_mov_b32 s24, s10
    s_and_b32 s25, s11, 0xffff
    s_mov_b32 s26, {1536*2}
    s_mov_b32 s27, 0x20000
    s_sub_u32 s60, s60, {1920*2}
    s_cmp_lt_u32 s66, 1280
    s_cbranch_scc1 K1_MAIN_N
    s_cmp_ge_u32 s66, 1920
    s_cbranch_scc1 K1_MAIN_N
    """)
    def reads(ks, s, p):
        buf = ks % 3
        va = vA[s] if buf < 2 else vA2[s]
        offA = buf*32768 if buf < 2 else 0
        F = FR[p]
        a(f"ds_read_b128 v[{F}:{F+3}], v{va} offset:{offA}")
        a(f"ds_read_b128 v[{F+4}:{F+7}], v{va} offset:{offA+4096}")
        for ni in range(2):
            for t in range(2):
                a(f"ds_read_b64_tr_b16 v[{F+8+4*ni+2*t}:{F+9+4*ni+2*t}], v{vB[ni]} offset:{buf*16384+s*2048+t*512}")
    def mfmas(p, vmode):
        F = FR[p]
        for mi in range(2):
            for ni in range(2):
                A = f"v[{F+4*mi}:{F+4*mi+3}]"; B = f"v[{F+8+4*ni}:{F+8+4*ni+3}]"
                c = acc(mi, ni)
                if vmode: a(f"v_mfma_f32_32x32x16_bf16 v[{c}:{c+15}], {A}, {B}, v[{c}:{c+15}]")
                else:     a(f"v_mfma_f32_32x32x16_bf16 v[{c}:{c+15}], {B}, {A}, v[{c}:{c+15}]")
    def stat_loads(vmode):
        if vmode:
            for ni in range(2):
                a(f"buffer_load_dword v{ST+ni}, v58, s[20:23], s59 offen offset:{128*ni} sc1")
            a(f"s_add_u32 s61, s58, {WS_ST}")
            a(f"s_add_u32 s63, s58, {WS_ST+8192}")
            for mi in range(2):
                for g in range(4):
                    r = ST + 4 + 8*(mi*4+g)
                    a(f"buffer_load_dwordx4 v[{r}:{r+3}], v59, s[20:23], s61 offen offset:{128*mi+32*g} sc1")
                    a(f"buffer_load_dwordx4 v[{r+4}:{r+7}], v59, s[20:23], s63 offen offset:{128*mi+32*g} sc1")
        else:
            a(f"s_cmp_eq_u32 s64, 0")
            a(f"s_cselect_b32 s61, {WS_ST}, {WS_ST+16384}")
            a(f"s_add_u32 s61, s61, s58")
            a(f"s_add_u32 s63, s61, 8192")
            for mi in range(2):
                a(f"buffer_load_dword v{ST+2*mi}, v58, s[20:23], s61 offen offset:{128*mi} sc1")
                a(f"buffer_load_dword v{ST+2*mi+1}, v58, s[20:23], s63 offen offset:{128*mi} sc1")
            for ni in range(2):
                for g in range(4):
                    r = ST + 4 + 4*(ni*4+g)
                    a(f"buffer_load_dwordx4 v[{r}:{r+3}], v59, s[20:23], s59 offen offset:{128*ni+32*g} sc1")
            lb = a.newlabel("K1_NB")
            a(f"s_cmp_eq_u32 s64, 0")
            a(f"s_cbranch_scc1 {lb}")
            for ni in range(2):
                for g in range(4):
                    r = ST + 36 + 2*(ni*4+g)
                    a(f"buffer_load_dwordx2 v[{r}:{r+1}], v60, s[24:27], s60 offen offset:{64*ni+16*g}")
            a.label(lb)
    def mainloop(vmode):
        tag = "V" if vmode else "N"
        stamp(a, 10)
        a("s_waitcnt vmcnt(6)")
        stamp(a, 11)
        a("s_barrier")
        stamp(a, 1)
        reads(0, 0, 0)
        step = 0
        for ks in range(NKS):
            for s in range(4):
                p = step % 2
                if s < 3:
                    reads(ks, s+1, 1-p)
                    a("s_waitcnt lgkmcnt(6)")
                else:
                    if ks + 1 < NKS:
                        a(f"s_waitcnt vmcnt({6 if ks+2 < NKS else 0}) lgkmcnt(0)")
                        a("s_barrier")
                        if ks == 7:
                            a(f"global_load_dword v62, v61, s[52:53] sc1")
                        if ks == 8:
                            a(f"v_readfirstlane_b32 s39, v62")
                            a(f"s_cmp_lt_u32 s39, {NARRIVE}")
                            a(f"s_cbranch_scc1 K1_NOTREADY_{tag}")
                            stat_loads(vmode)
                            a("s_mov_b32 s62, 1")
                            a(f"s_branch K1_READY1_{tag}")
                            a.label(f"K1_NOTREADY_{tag}")
                            a(f"global_load_dword v62, v61, s[52:53] sc1")
                            a.label(f"K1_READY1_{tag}")
                        reads(ks+1, 0, 1-p)
                    else:
                        a("s_waitcnt lgkmcnt(0)")
                mfmas(p, vmode)
                if s < 3 and ks + 2 < NKS: dma_piece(ks+2, s)
                step += 1
                if ks == NKS-1 and s == 1:
                    a(f"""
                    s_cmp_lg_u32 s62, 0
                    s_cbranch_scc1 K1_READY2_{tag}
                    s_waitcnt vmcnt(0)
                    v_readfirstlane_b32 s39, v62
                    s_cmp_lt_u32 s39, {NARRIVE}
                    s_cbranch_scc1 K1_READY2_{tag}
                    """)
                    stat_loads(vmode)
                    a("s_mov_b32 s62, 1")
                    a.label(f"K1_READY2_{tag}")
                if s == 3 and ks in (0, 4): stamp(a, 2 + ks//4)
        stamp(a, 6)
        if STAMP: a("s_add_u32 s77, s70, s62")
        a(f"""
        s_cmp_lg_u32 s62, 0
        s_cbranch_scc1 K1_READY_{tag}
        s_mov_b32 s40, 0
        K1_SPIN_{tag}:
        global_load_dword v62, v61, s[52:53] sc1
        s_waitcnt vmcnt(0)
        v_readfirstlane_b32 s39, v62
        s_cmp_ge_u32 s39, {NARRIVE}
        s_cbranch_scc1 K1_SPINDONE_{tag}
        s_sleep 8
        s_add_u32 s40, s40, 1
        s_cmp_lt_u32 s40, 0x40000
        s_cbranch_scc1 K1_SPIN_{tag}
        K1_SPINDONE_{tag}:
        """)
        stat_loads(vmode)
        a.label(f"K1_READY_{tag}")
        a("s_nop 7")
        a("s_waitcnt vmcnt(0)")
        stamp(a, 4)
    a.label("K1_MAIN_V")
    mainloop(True)
    a(f"""
    v_and_b32 v52, 31, v1
    s_sub_u32 s39, s66, 1280
    v_add_u32 v52, s39, v52
    s_lshl_b32 s40, s34, 3
    s_lshl_b32 s41, s36, 1
    s_add_u32 s40, s40, s41
    s_mul_i32 s40, s40, 2560
    s_add_u32 s40, s40, {WS_KV + 1280}
    s_add_u32 s41, s40, 2560         ; mi=1
    s_movk_i32 s42, 3277
    s_mov_b32 s43, {163840}
    v_mul_u32_u24 v53, 20, v3        ; h*20
    """)
    for ni in range(2):
        a(f"""
        v_add_u32 v54, {ni*32}, v52
        v_mul_u32_u24 v55, s42, v54
        v_lshrrev_b32 v55, 16, v55       ; head
        v_mul_u32_u24 v56, 20, v55
        v_sub_u32 v56, v54, v56          ; d
        v_add_u32 v56, v56, v53          ; h*20+d
        v_mul_lo_u32 v55, v55, s43
        v_lshl_add_u32 v{58+ni}, v56, 4, v55
        """)
    t = FR[0]
    k = 0
    for mi in range(2):
        for ni in range(2):
            c = acc(mi, ni)
            for g in range(4):
                r = ST + 4 + 8*(mi*4+g)
                for j in range(4):
                    a(f"v_mul_f32 v{52+j}, v{r+4+j}, v{ST+ni}")
                for j in range(4):
                    a(f"v_fma_f32 v{c+4*g+j}, v{c+4*g+j}, v{r+j}, v{52+j}")
            for pv in range(2):
                r = t + 4*(k % 8); k += 1
                for d in range(4):
                    a(f"v_cvt_pk_bf16_f32 v{r+d}, v{c+8*pv+2*d}, v{c+8*pv+2*d+1}")
                a(f"buffer_store_dwordx4 v[{r}:{r+3}], v{58+ni}, s[20:23], s{40+mi} offen offset:{pv*640}")
    if STAMP:
        a("s_waitcnt vmcnt(0)")
        stamp(a, 5); stamp_end(a, 1, 12)
    a("s_endpgm")
    a.label("K1_MAIN_N")
    mainloop(False)
    a(f"""
    s_cmp_lg_u32 s64, 0
    s_cbranch_scc1 K1_EPI_H
    """)
    a(f"""
    s_cmp_lt_u32 s66, 640
    s_cselect_b32 s39, 0, 640
    s_cselect_b32 s43, {81920}, {163840}
    s_cselect_b32 s44, 1280, 2560
    s_cselect_b32 s45, {WS_QF}, {WS_KV}
    s_cselect_b32 s46, 0x{f32bits(QSCALE):08x}, 0x3f800000
    s_sub_u32 s39, s66, s39
    v_lshlrev_b32 v52, 2, v3
    v_add_u32 v52, s39, v52          ; + 4h
    s_lshl_b32 s40, s34, 3
    s_lshl_b32 s41, s36, 1
    s_add_u32 s40, s40, s41
    s_mul_i32 s40, s40, s44
    s_add_u32 s40, s40, s45
    s_add_u32 s41, s40, s44          ; mi=1
    s_movk_i32 s42, 3277
    v_and_b32 v53, 31, v1            ; key
    v_lshlrev_b32 v54, 4, v53        ; key*16
    v_lshlrev_b32 v53, 3, v53        ; key*8
    v_add_u32 v53, 1024, v53         ; 1024 + key*8
    """)
    for q in range(4):
        a(f"v_mul_f32 v{ST+q}, s46, v{ST+q}")
    k = 0
    for ni in range(2):
        for g in range(4):
            a(f"""
            v_add_u32 v55, {ni*32+8*g}, v52      ; n'
            v_mul_u32_u24 v56, s42, v55
            v_lshrrev_b32 v56, 16, v56           ; head
            v_mul_u32_u24 v57, 20, v56
            v_sub_u32 v57, v55, v57              ; d
            v_lshrrev_b32 v58, 3, v57            ; d/8
            v_lshl_add_u32 v58, v58, 9, v54      ; (d/8)*512 + key*16
            v_and_b32 v59, 7, v57
            v_lshl_add_u32 v58, v59, 1, v58      ; + (d%8)*2
            v_cmp_gt_u32 vcc, 16, v57
            v_mul_lo_u32 v56, v56, s43
            s_nop 0
            v_cndmask_b32 v58, v53, v58, vcc
            v_add_u32 v58, v58, v56
            """)
            cs = ST + 4 + 4*(ni*4+g)
            for mi in range(2):
                c = acc(mi, ni) + 4*g
                r = FR[0] + 2*(k % 16); k += 1
                for j in range(4):
                    a(f"v_mul_f32 v{60+j}, v{ST+2*mi+1}, v{cs+j}")
                for j in range(4):
                    a(f"v_fma_f32 v{c+j}, v{c+j}, v{ST+2*mi}, v{60+j}")
                a(f"v_cvt_pk_bf16_f32 v{r}, v{c}, v{c+1}")
                a(f"v_cvt_pk_bf16_f32 v{r+1}, v{c+2}, v{c+3}")
                a(f"buffer_store_dwordx2 v[{r}:{r+1}], v58, s[20:23], s{40+mi} offen")
    if STAMP:
        a("s_waitcnt vmcnt(0)")
        stamp(a, 5); stamp_end(a, 1, 12)
    a("s_endpgm")
    a.label("K1_EPI_H")
    a(f"""
    v_and_b32 v52, 31, v1
    v_lshlrev_b32 v52, 4, v52
    v_lshl_add_u32 v52, v3, 3, v52   ; key*16 + h*8
    s_lshl_b32 s40, s34, 3
    s_lshl_b32 s41, s36, 1
    s_add_u32 s40, s40, s41
    s_mul_i32 s40, s40, {136*1024}
    s_lshl_b32 s39, s65, 2
    s_add_u32 s39, s39, 40
    s_lshl_b32 s39, s39, 10
    s_add_u32 s40, s40, s39
    s_add_u32 s40, s40, {WS_AF}
    s_add_u32 s41, s40, {136*1024}
    v_mov_b32 v53, 0x{f32bits(GC1):08x}
    """)
    k = 0
    BI = ST + 52
    for ni in range(2):
        for g in range(4):
            cs = ST + 4 + 4*(ni*4+g)
            br = ST + 36 + 2*(ni*4+g)
            for d in range(2):
                a(f"v_lshlrev_b32 v{BI+2*d}, 16, v{br+d}")
                a(f"v_and_b32 v{BI+2*d+1}, 0xffff0000, v{br+d}")
            for mi in range(2):
                c = acc(mi, ni) + 4*g
                T = 54
                for j in range(4): a(f"v_fma_f32 v{T+4+j}, v{ST+2*mi+1}, v{cs+j}, v{BI+j}")
                for j in range(4): a(f"v_fma_f32 v{c+j}, v{c+j}, v{ST+2*mi}, v{T+4+j}")
                for j in range(4): a(f"v_mul_f32 v{T+j}, v{c+j}, v{c+j}")
                for j in range(4): a(f"v_fmaak_f32 v{T+j}, v{T+j}, v53, 0x{f32bits(GC0):08x}")
                for j in range(4): a(f"v_mul_f32 v{T+j}, v{T+j}, v{c+j}")
                for j in range(4): a(f"v_exp_f32 v{T+j}, v{T+j}")
                for j in range(4): a(f"v_add_f32 v{T+j}, 1.0, v{T+j}")
                for j in range(4): a(f"v_rcp_f32 v{T+j}, v{T+j}")
                for j in range(4): a(f"v_mul_f32 v{T+j}, v{T+j}, v{c+j}")
                r = FR[0] + 2*(k % 16); k += 1
                a(f"v_cvt_pk_bf16_f32 v{r}, v{T}, v{T+1}")
                a(f"v_cvt_pk_bf16_f32 v{r+1}, v{T+2}, v{T+3}")
                a(f"buffer_store_dwordx2 v[{r}:{r+1}], v52, s[20:23], s{40+mi} offen offset:{(g%2)*512 + (ni*2+g//2)*1024}")
    if STAMP:
        a("s_waitcnt vmcnt(0)")
        stamp(a, 5); stamp_end(a, 1, 12)
    a.label("K1_END")
    a("s_endpgm")
    gen_side(a)
    return a.text(), kernel_desc(name, 200, 102 if STAMP else 72), f"; @launch kernel={name} grid=(256,1,1) block=(512,1,1) lds={K1_LDS}"
```

```python
from asmlib import *
import os

K2_RING = 40960
K2_FLAG = 40960
K2_RED = 41984
K2_LDS = K2_RED + 81920

def gen_k2():
    a = Asm()
    name = "k2_attn_kernel"
    a.lines.append(kernel_header(name))
    NU = int(os.environ.get("K2NU", "1")); NAW = 8 // NU
    if NU == 2:
        Q = [4, 10]; QH = [8, 14]; NC = [16, 32]; O = [48, 64]; S = [[80, 96], [112, 128]]; P = [144, 152]
        KLb = [160, 166]; KHb = [164, 170]; V = [172, 180]
        vKa = 188; vKHa = 189; vVa = 190; vDma = 191; T = 192
        NVG = 204
    else:
        Q = [4]; QH = [8]; NC = [16]; O = [32]; S = [[48, 64]]; P = [80]
        KLb = [88, 10]; KHb = [92, 14]; V = [96, 104]
        vKa = 112; vKHa = 113; vVa = 114; vDma = 115; T = 116
        NVG = 168
    DPR = 8 // NAW
    a(f"""
    s_cmp_ge_u32 s2, 256
    s_cbranch_scc1 K2_END
    s_load_dwordx2 s[6:7], s[0:1], {KA_WS}
    v_lshrrev_b32 v2, 6, v0
    v_and_b32 v1, 63, v0
    s_and_b32 s34, s2, 7
    s_lshl_b32 s34, s34, 2
    s_bfe_u32 s35, s2, 0x20003       ; (wg>>3)&3
    s_add_u32 s34, s34, s35          ; head
    s_lshr_b32 s35, s2, 5            ; qb
    v_readfirstlane_b32 s3, v2       ; w
    v_lshrrev_b32 v3, 5, v1          ; h
    v_and_b32 v2, 31, v1
    s_waitcnt lgkmcnt(0)
    """)
    stamp(a, 0)
    a(f"""
    s_mov_b32 s20, s6
    s_and_b32 s21, s7, 0xffff
    s_mov_b32 s22, {WS_END}
    s_mov_b32 s23, 0x20000
    s_cmp_ge_u32 s3, {NAW}
    s_cbranch_scc1 K2_GEMM
    s_lshl_b32 s35, s35, 3
    s_mul_i32 s36, s3, {NU}
    s_add_u32 s35, s35, s36          ; qtile (u=0)
    s_mov_b32 s40, 0x000fffff
    s_mov_b32 s41, 0x000fffff
    s_mov_b32 s42, 0
    s_mov_b32 s43, -1
    s_mov_b32 s44, -1
    s_mov_b32 s45, 0
    s_mov_b32 s46, 0
    s_mul_i32 s36, s34, 81920
    s_mul_i32 s37, s35, 1280
    s_add_u32 s36, s36, s37
    s_add_u32 s36, s36, {WS_QF}
    s_mul_i32 s37, s34, 163840
    s_add_u32 s37, s37, {WS_KV}
    v_lshlrev_b32 v{vKa}, 4, v1                 ; lane*16
    v_lshlrev_b32 v{vKHa}, 3, v2
    v_add_u32 v{vKHa}, 1024, v{vKHa}            ; 1024 + (l%32)*8
    v_mul_u32_u24 v{vVa}, 20, v3
    v_add_u32 v{vVa}, v{vVa}, v2
    v_lshlrev_b32 v{vVa}, 4, v{vVa}
    v_add_u32 v{vVa}, 1280, v{vVa}              ; 1280 + (h*20+d)*16
    s_mul_i32 s38, s3, {1024*DPR}
    v_add_u32 v{vDma}, s38, v{vKa}
    """)
    for u in range(NU):
        a(f"v_mov_b32 v{QH[u]}, 0")
        a(f"v_mov_b32 v{QH[u]+1}, 0")
    for u in range(NU):
        a(f"buffer_load_dwordx4 v[{Q[u]}:{Q[u]+3}], v{vKa}, s[20:23], s36 offen offset:{1280*u}")
    a("s_mov_b64 exec, s[44:45]")
    for u in range(NU):
        a(f"buffer_load_dwordx2 v[{QH[u]}:{QH[u]+1}], v{vKHa}, s[20:23], s36 offen offset:{1280*u}")
    a(f"""
    s_mov_b64 exec, -1
    v_mov_b32 v{T}, {K2_FLAG}
    v_mov_b32 v{T+1}, 0
    ds_write_b32 v{T}, v{T+1}
    v_mov_b32 v{T+2}, 0
    v_mov_b32 v{T+3}, 0x3f803f80
    v_cmp_eq_u32 vcc, 20, v2
    v_cmp_eq_u32 s[48:49], 24, v2
    s_or_b64 vcc, vcc, s[48:49]
    s_nop 1
    v_cndmask_b32 v{T+2}, v{T+2}, v{T+3}, vcc
    """)
    for b in range(2):
        for r in range(8):
            a(f"v_mov_b32 v{V[b]+r}, v{T+2}")
    a.label("K2_RESTART")
    a("s_mov_b32 s39, s37")
    def dma(slot):
        a(f"s_add_u32 m0, s38, {slot*8192}")
        a("s_nop 0")
        for i_ in range(DPR):
            a(f"buffer_load_dwordx4 v{vDma}, s[20:23], s39 offen offset:{1024*i_} lds")
        a("s_add_u32 s39, s39, 8192")
    dma(0); dma(1); dma(2)
    for u in range(NU):
        for r in range(16):
            a(f"v_mov_b32 v{O[u]+r}, 0")
        for r in range(4, 8):
            a(f"v_mov_b32 v{P[u]+r}, 0")
    a(f"s_waitcnt vmcnt({2*DPR}) lgkmcnt(0)")
    a("s_barrier")
    dma(3)
    def readK(tt):
        off = (tt % 16) * 2560
        kl = KLb[tt % 2]; kh = KHb[tt % 2]
        a(f"ds_read_b128 v[{kl}:{kl+3}], v{vKa} offset:{off}")
        a(f"ds_read_b64 v[{kh}:{kh+1}], v{vKHa} offset:{off}")
    def readV(tt):
        off = (tt % 16) * 2560
        b = V[tt % 2]
        a("s_mov_b64 exec, s[40:41]")
        a(f"ds_read_b128 v[{b}:{b+3}], v{vVa} offset:{off}")
        a(f"ds_read_b128 v[{b+4}:{b+7}], v{vVa} offset:{off+640}")
        a("s_mov_b64 exec, -1")
    KL = KLb[0]; KH = KHb[0]
    def qk(u, sb, c):
        a(f"v_mfma_f32_32x32x16_bf16 v[{sb}:{sb+15}], v[{KL}:{KL+3}], v[{Q[u]}:{Q[u]+3}], {c}")
        a(f"v_mfma_f32_32x32x8_bf16 v[{sb}:{sb+15}], v[{KH}:{KH+1}], v[{QH[u]}:{QH[u]+1}], v[{sb}:{sb+15}]")
    def maxtree(sb, dst, first):
        if first:
            a(f"v_max3_f32 v{dst}, v{sb}, v{sb+1}, v{sb+2}")
            a(f"v_max_f32 v{dst}, v{dst}, v{sb+3}")
            rng = range(4, 16, 2)
        else:
            rng = range(0, 16, 2)
        for i in rng:
            a(f"v_max3_f32 v{dst}, v{dst}, v{sb+i}, v{sb+i+1}")
    def crosshalf_to_nc(u, m):
        a(f"""
        v_mov_b32 v{T+2}, v{m}
        v_mov_b32 v{T+3}, v{m}
        s_nop 1
        v_permlane32_swap_b32 v{T+2}, v{T+3}
        s_nop 1
        v_max_f32 v{T+2}, v{T+2}, v{T+3}
        """)
        for r in range(16):
            a(f"v_sub_f32 v{NC[u]+r}, 0, v{T+2}")
    readK(0)
    a("s_waitcnt lgkmcnt(0)")
    a(f"""
    s_cmp_lg_u32 s46, 0
    s_cbranch_scc1 K2_HAVE_NC
    """)
    for u in range(NU): qk(u, S[u][0], "0")
    a("s_nop 15")
    for u in range(NU):
        maxtree(S[u][0], T+4+u, True)
    for u in range(NU):
        crosshalf_to_nc(u, T+4+u)
    a("s_nop 1")
    a.label("K2_HAVE_NC")
    for u in range(NU):
        qk(u, S[u][0], f"v[{NC[u]}:{NC[u]+15}]")
    readK(1)
    readV(0)
    a("s_mov_b32 s47, 0")
    stamp(a, 1)
    a.label("K2_LOOP")
    sync_at = {1:4, 4:0, 7:1, 10:2, 14:3}
    for tt in range(16):
        vb = V[tt % 2]; vp = V[(tt+1) % 2]
        kl = KLb[(tt+1) % 2]; kh = KHb[(tt+1) % 2]
        for u in range(NU):
            sc = S[u][tt % 2]; sn = S[u][(tt+1) % 2]; Pu = P[u]; Ou = O[u]
            def e(i): a(f"v_exp_f32 v{sc+i}, v{sc+i}")
            def c(j): a(f"v_cvt_pk_bf16_f32 v{Pu+j}, v{sc+2*j}, v{sc+2*j+1}")
            if u == 0: a("s_waitcnt lgkmcnt(2)")
            a(f"v_mfma_f32_32x32x16_bf16 v[{sn}:{sn+15}], v[{kl}:{kl+3}], v[{Q[u]}:{Q[u]+3}], v[{NC[u]}:{NC[u]+15}]")
            e(0); e(1); e(2); c(0); e(3)
            a(f"v_mfma_f32_32x32x16_bf16 v[{Ou}:{Ou+15}], v[{vp+4}:{vp+7}], v[{Pu+4}:{Pu+7}], v[{Ou}:{Ou+15}]")
            if u == NU-1:
                if tt in sync_at:
                    a(f"s_waitcnt vmcnt({2*DPR}) lgkmcnt(0)")
                    a("s_barrier")
                    dma(sync_at[tt])
                readK(tt+2)
                readV(tt+1)
            e(4); c(1); e(5); e(6); c(2); e(7)
            a(f"v_mfma_f32_32x32x8_bf16 v[{sn}:{sn+15}], v[{kh}:{kh+1}], v[{QH[u]}:{QH[u]+1}], v[{sn}:{sn+15}]")
            e(8); c(3); e(9); e(10); c(4); e(11)
            if u == 0: a(f"s_waitcnt lgkmcnt({0 if NU == 2 else 4})")
            a(f"v_mfma_f32_32x32x16_bf16 v[{Ou}:{Ou+15}], v[{vb}:{vb+3}], v[{Pu}:{Pu+3}], v[{Ou}:{Ou+15}]")
            e(12); e(13); c(5); e(14); e(15); c(6); c(7)
    a(f"""
    s_add_u32 s47, s47, 1
    s_cmp_lt_u32 s47, 4
    s_cbranch_scc1 K2_LOOP
    """)
    for u in range(NU):
        a(f"v_mfma_f32_32x32x16_bf16 v[{O[u]}:{O[u]+15}], v[{V[1]+4}:{V[1]+7}], v[{P[u]+4}:{P[u]+7}], v[{O[u]}:{O[u]+15}]")
    stamp(a, 2)
    a(f"""
    s_nop 15
    v_cndmask_b32 v{T+4}, v{O[0]+12}, v{O[0]+8}, s[42:43]     ; l (u=0)
    v_cndmask_b32 v{T+5}, v{O[NU-1]+12}, v{O[NU-1]+8}, s[42:43]     ; l (u=1)
    s_cmp_lg_u32 s46, 0
    s_cbranch_scc1 K2_FINISH
    v_mov_b32 v{T+6}, 0x5d800000
    v_cmp_nlt_f32 vcc, v{T+4}, v{T+6}
    v_cmp_nlt_f32 s[48:49], v{T+5}, v{T+6}
    v_mov_b32 v{T}, {K2_FLAG}
    v_mov_b32 v{T+1}, 1
    s_or_b64 vcc, vcc, s[48:49]
    s_and_saveexec_b64 s[48:49], vcc
    s_cbranch_execz K2_NOBAD
    ds_write_b32 v{T}, v{T+1}
    K2_NOBAD:
    s_mov_b64 exec, -1
    s_waitcnt vmcnt(0) lgkmcnt(0)
    s_barrier
    ds_read_b32 v{T+1}, v{T}
    s_waitcnt lgkmcnt(0)
    v_readfirstlane_b32 s48, v{T+1}
    s_cmp_eq_u32 s48, 0
    s_cbranch_scc1 K2_FINISH
    s_mov_b32 s46, 1
    s_mov_b32 s39, s37
    s_mov_b32 s47, 0
    v_mov_b32 v{T+4}, 0xff800000
    v_mov_b32 v{T+5}, 0xff800000
    K2_MAXLOOP:
    buffer_load_dwordx4 v[{KL}:{KL+3}], v{vKa}, s[20:23], s39 offen
    buffer_load_dwordx2 v[{KH}:{KH+1}], v{vKHa}, s[20:23], s39 offen
    s_waitcnt vmcnt(0)
    """)
    for u in range(NU): qk(u, S[u][0], "0")
    a("s_nop 15")
    for u in range(NU):
        maxtree(S[u][0], T+4+u, False)
    a(f"""
    s_add_u32 s39, s39, 2560
    s_add_u32 s47, s47, 1
    s_cmp_lt_u32 s47, 64
    s_cbranch_scc1 K2_MAXLOOP
    """)
    for u in range(NU):
        crosshalf_to_nc(u, T+4+u)
    a("s_barrier")
    a("s_branch K2_RESTART")
    a.label("K2_FINISH")
    a(f"""
    v_rcp_f32 v{T+4}, v{T+4}
    v_rcp_f32 v{T+5}, v{T+5}
    s_mul_i32 s48, s34, 20
    v_lshlrev_b32 v{T+6}, 2, v3
    v_add_u32 v{T+6}, s48, v{T+6}
    s_mul_i32 s48, s35, {136*1024}
    s_add_u32 s48, s48, {WS_AF}
    s_add_u32 s49, s48, {136*1024}
    v_lshlrev_b32 v{T+7}, 4, v2                ; q*16
    """)
    for g in range(3):
        a(f"""
        v_add_u32 v{T+8}, {8*g}, v{T+6}            ; k
        v_lshrrev_b32 v{T+9}, 3, v{T+8}            ; k>>3 = s*2+hh
        v_lshl_add_u32 v{T+9}, v{T+9}, 9, v{T+7}   ; *512 + q*16
        v_and_b32 v{T+8}, 7, v{T+8}
        v_lshl_add_u32 v{T+9}, v{T+8}, 1, v{T+9}
        """)
        for u in range(NU):
            for j in range(4):
                a(f"v_mul_f32 v{O[u]+4*g+j}, v{O[u]+4*g+j}, v{T+4+u}")
            a(f"v_cvt_pk_bf16_f32 v{P[u]+2*g}, v{O[u]+4*g}, v{O[u]+4*g+1}")
            a(f"v_cvt_pk_bf16_f32 v{P[u]+2*g+1}, v{O[u]+4*g+2}, v{O[u]+4*g+3}")
        if g == 2: a("s_mov_b64 exec, s[44:45]")
        for u in range(NU):
            a(f"buffer_store_dwordx2 v[{P[u]+2*g}:{P[u]+2*g+1}], v{T+9}, s[20:23], s{48+u} offen")
    if STAMP:
        a("s_waitcnt vmcnt(0)")
        stamp(a, 3); stamp_end(a, 2, 4)
    a("s_endpgm")
    a.label("K2_GEMM")
    NS = 24; DEPTH = 3
    pat = [1,1,1,2]*4 + [1,2,1]
    assert sum(pat) == 24 and len(pat) == 19
    BAR_AFTER = set()
    acc_ = 0
    for p_ in pat:
        acc_ += p_; BAR_AFTER.add(acc_-1)
    ACC = 16; FB = 96
    a(f"""
    s_sub_u32 s36, s3, {NAW}             ; g
    s_and_b32 s34, s2, 7
    s_lshl_b32 s34, s34, 3
    s_bfe_u32 s35, s2, 0x30003       ; (wg>>3)&7
    s_add_u32 s34, s34, s35          ; mt32
    s_lshr_b32 s35, s2, 6            ; ng
    v_lshlrev_b32 v4, 4, v1          ; lane*16
    v_add_u32 v5, 4096, v4
    s_mul_i32 s39, s36, {NS}
    s_add_u32 s39, s39, 40           ; first s
    s_mul_i32 s37, s34, {136*1024}
    s_lshl_b32 s38, s39, 10
    s_add_u32 s37, s37, s38
    s_add_u32 s37, s37, {WS_AF}      ; A soffset
    s_mul_i32 s38, s39, 20
    s_mul_i32 s39, s35, 5
    s_add_u32 s38, s38, s39
    s_lshl_b32 s38, s38, 10
    s_add_u32 s38, s38, {WS_WF}      ; B soffset
    """)
    EXP = os.environ.get("K2EXP", "")
    def loads(i):
        if "nogemm" in EXP: return
        F = FB + (i % DEPTH)*24
        a(f"buffer_load_dwordx4 v[{F}:{F+3}], v4, s[20:23], s37 offen")
        for j in range(4):
            a(f"buffer_load_dwordx4 v[{F+4+4*j}:{F+7+4*j}], v4, s[20:23], s38 offen offset:{1024*j}")
        a(f"buffer_load_dwordx4 v[{F+20}:{F+23}], v5, s[20:23], s38 offen")
        a("s_add_u32 s37, s37, 1024")
        a("s_add_u32 s38, s38, 20480")
    for i in range(DEPTH-1): loads(i)
    for r in range(80): a(f"v_mov_b32 v{ACC+r}, 0")
    a("s_barrier")
    for i in range(NS):
        if i + DEPTH - 1 < NS:
            loads(i + DEPTH - 1)
        rem = min(DEPTH-1, NS-1-i)
        a(f"s_waitcnt vmcnt({6*rem})")
        F = FB + (i % DEPTH)*24
        for j in range(5):
            c = ACC + 16*j
            if "nogemm" not in EXP and "nogmfma" not in EXP: a(f"v_mfma_f32_32x32x16_bf16 v[{c}:{c+15}], v[{F+4+4*j}:{F+7+4*j}], v[{F}:{F+3}], v[{c}:{c+15}]")
        if i in BAR_AFTER: a("s_barrier")
    a(f"""
    s_mul_i32 s40, s36, 20480
    s_add_u32 s40, s40, {K2_RED}
    v_add_u32 v8, s40, v4
    s_nop 7
    """)
    for idx in range(20):
        c = ACC + 4*idx
        a(f"ds_write_b128 v8, v[{c}:{c+3}] offset:{1024*idx}")
    a(f"""
    s_mul_i32 s40, s36, 5120
    s_add_u32 s40, s40, {K2_RED}
    v_add_u32 v9, s40, v4
    v_add_u32 v10, 0xA000, v9
    s_lshl_b32 s40, s34, 2
    s_add_u32 s40, s40, s35
    s_mul_i32 s40, s40, 20
    s_mul_i32 s41, s36, 5
    s_add_u32 s40, s40, s41
    s_lshl_b32 s40, s40, 10
    s_add_u32 s40, s40, {WS_MP}
    s_waitcnt lgkmcnt(0)
    s_barrier
    """)
    RB = ACC
    for e in range(5):
        for ww in range(4):
            base = 9 if ww < 2 else 10
            a(f"ds_read_b128 v[{RB+16*e+4*ww}:{RB+16*e+4*ww+3}], v{base} offset:{(ww%2)*20480 + 1024*e}")
    for e in range(5):
        a(f"s_waitcnt lgkmcnt({min(15,4*(4-e))})")
        r = RB + 16*e
        for j in range(4):
            a(f"v_add_f32 v{r+j}, v{r+j}, v{r+4+j}")
            a(f"v_add_f32 v{r+8+j}, v{r+8+j}, v{r+12+j}")
        for j in range(4):
            a(f"v_add_f32 v{r+j}, v{r+j}, v{r+8+j}")
        if e < 4: a(f"buffer_store_dwordx4 v[{r}:{r+3}], v4, s[20:23], s40 offen offset:{1024*e}")
        else:     a(f"buffer_store_dwordx4 v[{r}:{r+3}], v5, s[20:23], s40 offen")
    if STAMP:
        a("s_waitcnt vmcnt(0)")
        stamp(a, 1); stamp(a, 2); stamp(a, 3); stamp_end(a, 2, 4)
    a.label("K2_END")
    a("s_endpgm")
    return a.text(), kernel_desc(name, NVG, 102 if STAMP else 56), f"; @launch kernel={name} grid=(256,1,1) block=({(NAW+4)*64},1,1) lds={K2_LDS}"
```

```python
from asmlib import *

K3_LDS = 81920
def gen_k3():
    a = Asm()
    name = "k3_out_kernel"
    a.lines.append(kernel_header(name))
    NS = 10
    FB = 16
    a(f"""
    s_cmp_ge_u32 s2, 256
    s_cbranch_scc1 K3_END
    s_load_dwordx2 s[6:7], s[0:1], {KA_WS}
    s_load_dwordx2 s[8:9], s[0:1], {KA_X}
    s_load_dwordx2 s[10:11], s[0:1], {KA_B2}
    s_load_dwordx2 s[4:5], s[0:1], {KA_OUT}
    v_lshrrev_b32 v2, 6, v0
    v_and_b32 v1, 63, v0
    s_and_b32 s34, s2, 63            ; mt32
    s_lshr_b32 s35, s2, 6            ; ng
    v_readfirstlane_b32 s3, v2
    v_lshlrev_b32 v4, 4, v1          ; lane*16
    v_add_u32 v5, 4096, v4
    s_mul_i32 s36, s3, {NS}          ; first s
    s_mul_i32 s37, s34, {136*1024}
    s_lshl_b32 s38, s36, 10
    s_add_u32 s37, s37, s38
    s_add_u32 s37, s37, {WS_AF}      ; A soffset
    s_mul_i32 s38, s36, 20
    s_mul_i32 s39, s35, 5
    s_add_u32 s38, s38, s39
    s_lshl_b32 s38, s38, 10
    s_add_u32 s38, s38, {WS_WF}      ; B soffset
    s_waitcnt lgkmcnt(0)
    """)
    stamp(a, 0)
    a(f"""
    s_mov_b32 s20, s6
    s_and_b32 s21, s7, 0xffff
    s_mov_b32 s22, {WS_END}
    s_mov_b32 s23, 0x20000
    """)
    for i in range(NS):
        F = FB + i*24
        a(f"buffer_load_dwordx4 v[{F}:{F+3}], v4, s[20:23], s37 offen")
        for j in range(4):
            a(f"buffer_load_dwordx4 v[{F+4+4*j}:{F+7+4*j}], v4, s[20:23], s38 offen offset:{1024*j}")
        a(f"buffer_load_dwordx4 v[{F+20}:{F+23}], v5, s[20:23], s38 offen")
        a("s_add_u32 s37, s37, 1024")
        a("s_add_u32 s38, s38, 20480")
    for r in range(80): a(f"v_accvgpr_write_b32 a{r}, 0")
    a(f"""
    s_mov_b32 s12, s8
    s_and_b32 s13, s9, 0xffff
    s_mov_b32 s14, {2048*1280}
    s_mov_b32 s15, 0x20000
    s_mov_b32 s16, s10
    s_and_b32 s17, s11, 0xffff
    s_mov_b32 s18, 1280
    s_mov_b32 s19, 0x20000
    s_mov_b32 s24, s4
    s_and_b32 s25, s5, 0xffff
    s_mov_b32 s26, {2048*1280}
    s_mov_b32 s27, 0x20000
    v_lshrrev_b32 v3, 5, v1          ; h
    v_and_b32 v2, 31, v1
    s_mul_i32 s39, s35, 320
    s_mul_i32 s40, s3, 80            ; 5w*8*2 bytes
    s_add_u32 s39, s39, s40
    v_lshlrev_b32 v6, 3, v3          ; 4h*2
    v_add_u32 v6, s39, v6            ; b2 voff
    s_lshl_b32 s40, s34, 5
    v_add_u32 v7, s40, v2            ; token
    s_movk_i32 s41, 1280
    v_mul_lo_u32 v7, v7, s41
    v_add_u32 v7, v7, v6
    s_lshl_b32 s40, s34, 2
    s_add_u32 s40, s40, s35
    s_mul_i32 s40, s40, 20
    s_mul_i32 s41, s3, 5
    s_add_u32 s40, s40, s41
    s_lshl_b32 s40, s40, 10
    s_add_u32 s40, s40, {WS_MP}
    s_mul_i32 s41, s3, 20480
    v_add_u32 v8, s41, v4
    s_mul_i32 s41, s3, 5120
    v_add_u32 v9, s41, v4
    v_add_u32 v10, 0xA000, v9        ; +40960
    """)
    XB = FB; MB = FB + 20
    extra = 0
    for i in range(NS):
        a(f"s_waitcnt vmcnt({6*(NS-1-i) + extra})")
        F = FB + i*24
        for j in range(5):
            c = 16*j
            a(f"v_mfma_f32_32x32x16_bf16 a[{c}:{c+15}], v[{F+4+4*j}:{F+7+4*j}], v[{F}:{F+3}], a[{c}:{c+15}]")
        if i == 2:
            for e in range(5):
                a(f"buffer_load_dwordx2 v[{XB+4*e}:{XB+4*e+1}], v7, s[12:15], 0 offen offset:{16*e}")
                a(f"buffer_load_dwordx2 v[{XB+4*e+2}:{XB+4*e+3}], v6, s[16:19], 0 offen offset:{16*e}")
            for e in range(5):
                if e < 4: a(f"buffer_load_dwordx4 v[{MB+4*e}:{MB+4*e+3}], v4, s[20:23], s40 offen offset:{1024*e}")
                else:     a(f"buffer_load_dwordx4 v[{MB+4*e}:{MB+4*e+3}], v5, s[20:23], s40 offen")
            extra = 15
    stamp(a, 1)
    a("s_nop 15")
    for idx in range(20):
        c = 4*idx
        a(f"ds_write_b128 v8, a[{c}:{c+3}] offset:{1024*idx}")
    a(f"""
    s_waitcnt lgkmcnt(0)
    s_barrier
    """)
    RB = FB + 64
    for e in range(5):
        for ww in range(4):
            base = 9 if ww < 2 else 10
            a(f"ds_read_b128 v[{RB+16*e+4*ww}:{RB+16*e+4*ww+3}], v{base} offset:{(ww%2)*20480 + 1024*e}")
    a("s_waitcnt vmcnt(0)")
    for e in range(5):
        r = RB + 16*e
        xb = XB + 4*e
        T = RB + 96
        for d in range(2):
            a(f"v_lshlrev_b32 v{T+2*d}, 16, v{xb+d}")
            a(f"v_and_b32 v{T+1+2*d}, 0xffff0000, v{xb+d}")
            a(f"v_lshlrev_b32 v{T+4+2*d}, 16, v{xb+2+d}")
            a(f"v_and_b32 v{T+5+2*d}, 0xffff0000, v{xb+2+d}")
        for j in range(4):
            a(f"v_add_f32 v{T+j}, v{T+j}, v{T+4+j}")
        for j in range(4):
            a(f"v_add_f32 v{T+j}, v{T+j}, v{MB+4*e+j}")
        a(f"s_waitcnt lgkmcnt({min(15,4*(4-e))})")
        for j in range(4):
            a(f"v_add_f32 v{r+j}, v{r+j}, v{r+4+j}")
            a(f"v_add_f32 v{r+8+j}, v{r+8+j}, v{r+12+j}")
        for j in range(4):
            a(f"v_add_f32 v{r+j}, v{r+j}, v{r+8+j}")
        for j in range(4):
            a(f"v_add_f32 v{r+j}, v{r+j}, v{T+j}")
        a(f"v_cvt_pk_bf16_f32 v{r+12}, v{r}, v{r+1}")
        a(f"v_cvt_pk_bf16_f32 v{r+13}, v{r+2}, v{r+3}")
        a(f"buffer_store_dwordx2 v[{r+12}:{r+13}], v7, s[24:27], 0 offen offset:{16*e}")
    if STAMP:
        a("s_waitcnt vmcnt(0)")
        stamp(a, 2); stamp_end(a, 3, 3)
    a.label("K3_END")
    a("s_endpgm")
    return a.text(), kernel_desc(name, 256+80, 102 if STAMP else 56, accum=256), f"; @launch kernel={name} grid=(256,1,1) block=(256,1,1) lds={K3_LDS}"
```

```python
from asmlib import *
import math

LOG2E = 1.4426950408889634
QSCALE = (20 ** -0.5) * LOG2E
GC0 = -2.0 * math.sqrt(2.0/math.pi) * LOG2E
GC1 = GC0 * 0.044715

NKS = 10
NARRIVE = 40
LDS_B = 98304
LDS_ST = 98304 + 3*16384
LDS_CSP = LDS_ST + 4096
LDS_CS = LDS_CSP + 2048
K1_LDS = LDS_CS + 2048

def gen_side(a):
    a.label("K1_SIDE")
    a(f"""
    s_lshl_b32 s35, s2, 3
    s_add_u32 s35, s35, s3
    s_mov_b32 s12, s50
    s_and_b32 s13, s51, 0xffff
    s_mov_b32 s14, {2048*1280}
    s_mov_b32 s15, 0x20000
    s_lshl_b32 s36, s35, 1
    v_lshrrev_b32 v3, 5, v1
    v_add_u32 v3, s36, v3
    v_and_b32 v4, 31, v1
    s_movk_i32 s36, 1280
    v_mul_lo_u32 v5, v3, s36
    v_lshl_add_u32 v5, v4, 3, v5     ; voff
    v_lshlrev_b32 v3, 2, v3
    """)
    L = 64; NIT = 4; T = 40
    for it in range(NIT):
        a(f"s_mov_b32 s37, {640*1280*it}")
        for j in range(5):
            a(f"buffer_load_dwordx2 v[{L+10*it+2*j}:{L+10*it+2*j+1}], v5, s[12:15], s37 offen offset:{256*j}")
    def rne(r):
        a(f"v_cvt_pk_bf16_f32 v{r}, v{r}, v{r}")
        a(f"v_lshlrev_b32 v{r}, 16, v{r}")
    a("v_mov_b32 v6, 0x3f803f80")
    for it in range(NIT):
        a(f"v_mov_b32 v{20+it}, 0")
        a(f"v_mov_b32 v{26+it}, 0")
    for it in range(NIT):
        a(f"s_waitcnt vmcnt({5*(NIT-1-it)})")
        for j_ in range(10):
            a(f"v_dot2_f32_bf16 v{20+it}, v{L+10*it+j_}, v6, v{20+it}")
            a(f"v_dot2_f32_bf16 v{26+it}, v{L+10*it+j_}, v{L+10*it+j_}, v{26+it}")
    regs = [20+it for it in range(NIT)] + [26+it for it in range(NIT)]
    a("s_nop 3")
    for sh in (8,4,2,1):
        for r in regs:
            a(f"v_add_f32_dpp v{r}, v{r}, v{r} row_ror:{sh} row_mask:0xf bank_mask:0xf")
    for k_, r in enumerate(regs):
        a(f"ds_swizzle_b32 v{32+k_}, v{r} offset:0x401F")
    a("s_waitcnt lgkmcnt(0)")
    for k_, r in enumerate(regs):
        a(f"v_add_f32 v{r}, v{r}, v{32+k_}")
    S = T; M = T+1; A0 = T+2; A1 = T+3; R = T+4; D0 = T+5; D1 = T+6; MB = T+7; VV = T+8
    a(f"v_mov_b32 v{S}, v20")
    a(f"v_mov_b32 v{A0}, v26")
    for it in range(1, NIT):
        a(f"v_cmp_eq_u32 vcc, {it}, v4")
        a("s_nop 1")
        a(f"v_cndmask_b32 v{S}, v{S}, v{20+it}, vcc")
        a(f"v_cndmask_b32 v{A0}, v{A0}, v{26+it}, vcc")
    a(f"v_mul_f32 v{M}, 0x{f32bits(1.0/640):08x}, v{S}")
    a(f"v_mul_f32 v{A0}, 0x{f32bits(1.0/640):08x}, v{A0}")
    a(f"v_fma_f32 v{VV}, -v{M}, v{M}, v{A0}")
    a(f"v_max_f32 v{VV}, 0, v{VV}")
    a(f"v_mov_b32 v{MB}, v{M}"); rne(MB)
    a(f"v_mov_b32 v{A0}, v{VV}"); rne(A0)
    a(f"v_add_f32 v{A0}, 0x{f32bits(1e-5):08x}, v{A0}"); rne(A0)
    a(f"v_sqrt_f32 v{A0}, v{A0}"); a("s_nop 0"); rne(A0)
    a(f"v_rcp_f32 v{R}, v{A0}"); a("s_nop 0")
    a(f"v_sub_f32 v{D0}, v{M}, v{MB}")
    a(f"v_mul_f32 v{D0}, v{D0}, v{R}"); rne(D0)
    a(f"v_mul_f32 v{D1}, v{VV}, v{R}")
    a(f"v_mul_f32 v{D1}, v{D1}, v{R}"); rne(D1)
    a(f"v_add_f32 v{D1}, 0x{f32bits(1e-5):08x}, v{D1}"); rne(D1)
    a(f"v_sqrt_f32 v{D1}, v{D1}"); a("s_nop 0"); rne(D1)
    a(f"v_rcp_f32 v{D1}, v{D1}"); a("s_nop 0")
    O = 50
    a(f"v_mov_b32 v{O}, v{R}")
    a(f"v_mul_f32 v{O+1}, v{R}, v{MB}")
    a(f"v_mul_f32 v{O+2}, v{R}, v{D1}")
    a(f"v_add_f32 v{O+3}, v{O+1}, v{D0}")
    a(f"v_mul_f32 v{O+3}, v{O+3}, v{D1}")
    a(f"v_sub_f32 v{O+1}, 0, v{O+1}")
    a(f"v_sub_f32 v{O+3}, 0, v{O+3}")
    a(f"v_mul_u32_u24 v7, {640*4}, v4")
    a(f"v_add_u32 v7, v7, v3")
    a(f"v_cmp_gt_u32 s[40:41], {NIT}, v4")
    a(f"v_cmp_gt_u32 vcc, {2048*4}, v7")
    a("s_and_b64 s[40:41], s[40:41], vcc")
    a("s_mov_b64 exec, s[40:41]")
    for q in range(4):
        a(f"s_mov_b32 s37, {WS_ST + 8192*q}")
        a(f"buffer_store_dword v{O+q}, v7, s[20:23], s37 offen sc1")
    a("s_mov_b64 exec, -1")
    stamp(a, 2)
    a(f"""
    s_waitcnt vmcnt(0)
    s_barrier
    s_cmp_lg_u32 s3, 0
    s_cbranch_scc1 K1_SIDE_RELAYOUT
    s_mov_b64 exec, 1
    v_mov_b32 v6, 0
    v_mov_b32 v7, 1
    global_atomic_add v6, v7, s[52:53] sc1
    s_mov_b64 exec, -1
    K1_SIDE_RELAYOUT:
    """)
    stamp(a, 3)
    a(f"""
    v_lshrrev_b32 v3, 5, v1          ; h
    v_and_b32 v4, 31, v1             ; n
    s_movk_i32 s24, {8*1280}
    v_mul_lo_u32 v3, v3, s24
    v_lshl_add_u32 v3, v4, 1, v3     ; h*8*1280 + n*2
    v_lshlrev_b32 v5, 4, v1
    v_add_u32 v6, 4096, v5
    K1_RL_LOOP:
    s_lshr_b32 s36, s35, 2           ; s
    s_and_b32 s37, s35, 3
    s_mul_i32 s37, s37, 5            ; t0
    s_cmp_lt_u32 s36, 40
    s_cselect_b32 s12, s54, s56
    s_cselect_b32 s13, s55, s57
    s_cselect_b32 s14, {640*1280}, {1536*1280}
    s_cselect_b32 s38, 0, 40
    s_and_b32 s13, s13, 0xffff
    s_mov_b32 s15, 0x20000
    s_sub_u32 s38, s36, s38
    s_mul_i32 s38, s38, {16*1280}
    s_lshl_b32 s39, s37, 6
    s_add_u32 s38, s38, s39
    """)
    for j in range(8):
        a(f"s_add_u32 s{24+j}, s38, {1280*j}")
    for tt in range(5):
        for j in range(8):
            a(f"buffer_load_ushort v{10+8*tt+j}, v3, s[12:15], s{24+j} offen offset:{64*tt}")
    a(f"""
    s_mul_i32 s38, s36, 20
    s_add_u32 s38, s38, s37
    s_lshl_b32 s38, s38, 10
    s_add_u32 s38, s38, {WS_WF}
    """)
    for tt in range(5):
        a(f"s_waitcnt vmcnt({8*(4-tt)+tt})")
        for d in range(4):
            a(f"v_lshl_or_b32 v{52+4*(tt%3)+d}, v{10+8*tt+2*d+1}, 16, v{10+8*tt+2*d}")
        r = 52+4*(tt%3)
        a(f"buffer_store_dwordx4 v[{r}:{r+3}], v5, s[20:23], s38 offen offset:{1024*tt}" if tt < 4 else
          f"buffer_store_dwordx4 v[{r}:{r+3}], v6, s[20:23], s38 offen")
    a(f"""
    s_waitcnt vmcnt(0)
    s_add_u32 s35, s35, 320
    s_cmp_lt_u32 s35, 544
    s_cbranch_scc1 K1_RL_LOOP
    """)
    stamp(a, 1); stamp_end(a, 0, 4)
    a("s_endpgm")

def gen_k1():
    a = Asm()
    name = "k1_gemm_kernel"
    a.lines.append(kernel_header(name))
    vDA = [4,5,6,7]; vDB = [8,9]
    vA = [[10,11,12,13], [200,201,202,203]]
    vA2 = [[14,15,16,17], [204,205,206,207]]
    vB = [18,19]
    FR = [20, 36]
    ACC = 64
    ST = 128
    RS = 208
    def acc(mi, ni): return ACC + (mi*2+ni)*16
    a(f"""
    s_cmp_ge_u32 s2, 256
    s_cbranch_scc1 K1_END
    s_load_dwordx2 s[4:5], s[0:1], {KA_WQKV}
    s_load_dwordx2 s[6:7], s[0:1], {KA_WS}
    s_load_dwordx2 s[8:9], s[0:1], {KA_W1}
    s_load_dwordx2 s[10:11], s[0:1], {KA_B1}
    s_load_dwordx2 s[50:51], s[0:1], {KA_X}
    s_load_dwordx2 s[52:53], s[0:1], {KA_DBG}
    s_load_dwordx2 s[54:55], s[0:1], {KA_WO}
    s_load_dwordx2 s[56:57], s[0:1], {KA_W2}
    v_lshrrev_b32 v2, 6, v0
    v_and_b32 v1, 63, v0
    ; tile index T = (wg%8)*27 + (wg-40)/8 ; mh = T/108 ; rem = T%108 ; nt = rem/4 ; mt = mh*4 + rem%4
    s_and_b32 s38, s2, 7
    s_mul_i32 s38, s38, 27
    s_lshr_b32 s39, s2, 3
    s_sub_u32 s39, s39, 5
    s_add_u32 s38, s38, s39
    s_cmp_ge_u32 s38, 108
    s_cselect_b32 s39, 108, 0
    s_cselect_b32 s34, 4, 0
    s_sub_u32 s38, s38, s39
    s_lshr_b32 s35, s38, 2           ; nt
    s_and_b32 s38, s38, 3
    s_add_u32 s34, s34, s38          ; mt
    v_readfirstlane_b32 s3, v2
    s_and_b32 s36, s3, 3             ; wm
    s_lshr_b32 s37, s3, 2            ; wn
    s_waitcnt lgkmcnt(0)
    """)
    stamp(a, 0)
    a(f"""
    s_mov_b32 s20, s6
    s_and_b32 s21, s7, 0xffff
    s_mov_b32 s22, {WS_END}
    s_mov_b32 s23, 0x20000
    s_cmp_lt_u32 s2, 40
    s_cbranch_scc1 K1_SIDE
    s_mul_i32 s39, s34, {256*1280}
    s_add_u32 s12, s50, s39
    s_addc_u32 s13, s51, 0
    s_and_b32 s13, s13, 0xffff
    s_mov_b32 s14, {256*1280}
    s_mov_b32 s15, 0x20000
    s_cmp_lt_u32 s35, 24
    s_cselect_b32 s64, s37, 0
    s_sub_u32 s39, s35, 24
    s_lshl_b32 s39, s39, 1
    s_add_u32 s39, s39, 24
    s_add_u32 s39, s39, s37
    s_cmp_lt_u32 s35, 24
    s_cselect_b32 s65, s35, s39
    ; SRD_B s[16:19]
    s_cmp_eq_u32 s64, 0
    s_cselect_b32 s16, s4, s8
    s_cselect_b32 s17, s5, s9
    s_cselect_b32 s28, 3840, 3072
    s_cselect_b32 s18, {640*3840}, {640*3072}
    s_cselect_b32 s66, 0, 1920
    s_lshl_b32 s39, s65, 7
    s_add_u32 s16, s16, s39
    s_addc_u32 s17, s17, 0
    s_and_b32 s17, s17, 0xffff
    s_sub_u32 s18, s18, s39
    s_mov_b32 s19, 0x20000
    s_lshl_b32 s39, s65, 6
    s_add_u32 s66, s66, s39
    s_lshl_b32 s31, s28, 6           ; 64*ldb
    s_lshl_b32 s32, s3, 12           ; w*4096
    s_lshl_b32 s33, s3, 11
    s_add_u32 s33, s33, {LDS_B}
    v_lshrrev_b32 v3, 5, v1          ; h
    v_lshrrev_b32 v52, 3, v1         ; l/8
    v_and_b32 v53, 7, v1             ; c'
    v_lshrrev_b32 v54, 4, v1         ; l/16
    s_lshl_b32 s39, s3, 5            ; w*32 rows
    s_movk_i32 s40, 1280
    v_add_u32 v55, s39, v52
    v_mul_lo_u32 v55, v55, s40       ; row*1280 (i=0)
    v_xor_b32 v56, v53, v54          ; c (i even)
    v_xor_b32 v57, 4, v56            ; c (i odd)
    v_lshl_add_u32 v{vDA[0]}, v56, 4, v55
    v_lshl_add_u32 v{vDA[1]}, v57, 4, v55
    v_add_u32 v{vDA[1]}, {8*1280-1024}, v{vDA[1]}
    v_add_u32 v{vDA[2]}, {16*1280-2048}, v{vDA[0]}
    v_add_u32 v{vDA[3]}, {16*1280-2048}, v{vDA[1]}
    v_and_b32 v56, 1, v54            ; (l/16)&1
    v_lshlrev_b32 v56, 2, v56
    v_xor_b32 v56, v53, v56          ; c
    s_lshl_b32 s39, s36, 4           ; (w&3)*16 krows
    v_add_u32 v55, s39, v52          ; + l/8
    v_mul_lo_u32 v55, v55, s28
    v_lshl_add_u32 v{vDB[0]}, v56, 4, v55
    s_lshl_b32 s39, s28, 3
    s_sub_u32 s39, s39, 1024
    v_add_u32 v{vDB[1]}, s39, v{vDB[0]}
    s_mov_b32 s29, 0
    s_mov_b32 s30, 0
    """)
    def dma_piece(ks, piece):
        buf = ks % 3
        if piece < 2:
            a(f"s_add_u32 m0, s32, {buf*32768}")
            a("s_nop 0")
            for i in (2*piece, 2*piece+1):
                a(f"buffer_load_dwordx4 v{vDA[i]}, s[12:15], s29 offen offset:{i*1024} lds")
            if piece == 1: a("s_add_u32 s29, s29, 128")
        else:
            a(f"s_add_u32 m0, s33, {buf*16384}")
            a("s_nop 0")
            for i in range(2):
                a(f"buffer_load_dwordx4 v{vDB[i]}, s[16:19], s30 offen offset:{i*1024} lds")
            a("s_add_u32 s30, s30, s31")
    def dma(ks):
        for p_ in range(3): dma_piece(ks, p_)
    dma(0)
    a("s_barrier")
    dma(1)
    a(f"""
    v_and_b32 v52, 31, v1            ; r
    s_lshl_b32 s39, s36, 6           ; wm*64
    s_lshl_b32 s40, s37, 5
    s_add_u32 s39, s39, s40          ; + wn*32
    v_add_u32 v53, s39, v52
    v_lshlrev_b32 v53, 7, v53
    v_lshrrev_b32 v54, 1, v52
    v_and_b32 v54, 7, v54            ; f
    """)
    for s in range(4):
        a(f"""
        v_add_u32 v55, {2*s}, v3
        v_xor_b32 v55, v55, v54
        v_lshl_add_u32 v{vA[0][s]}, v55, 4, v53
        v_xor_b32 v{vA[1][s]}, 0x1000, v{vA[0][s]}
        v_add_u32 v{vA2[0][s]}, 0x10000, v{vA[0][s]}
        v_add_u32 v{vA2[1][s]}, 0x10000, v{vA[1][s]}
        """)
    a(f"""
    v_lshrrev_b32 v52, 4, v1         ; gq
    v_and_b32 v53, 15, v1            ; i
    v_lshrrev_b32 v54, 2, v53        ; i/4
    v_lshrrev_b32 v55, 1, v52        ; gq/2
    v_lshl_add_u32 v55, v55, 3, v54
    v_lshlrev_b32 v55, 7, v55        ; *128
    v_and_b32 v56, 1, v53
    v_lshl_add_u32 v55, v56, 3, v55  ; + (i%2)*8
    s_lshl_b32 s39, s37, 13          ; wn*8192
    s_add_u32 s39, s39, {LDS_B}
    v_add_u32 v55, s39, v55
    v_and_b32 v56, 1, v52            ; gq%2
    v_lshlrev_b32 v56, 1, v56
    v_bfe_u32 v57, v53, 1, 1         ; (i%4)/2
    v_add_u32 v56, v56, v57
    v_bfe_u32 v54, v53, 3, 1
    v_lshlrev_b32 v54, 2, v54        ; ((i>>3)&1)<<2
    """)
    for ni in range(2):
        a(f"""
        v_add_u32 v57, {ni*4}, v56
        v_xor_b32 v57, v57, v54
        v_lshl_add_u32 v{vB[ni]}, v57, 4, v55
        """)
    for r in range(64):
        a(f"v_mov_b32 v{ACC+r}, 0")
    for r in range(8):
        a(f"v_mov_b32 v{RS+r}, 0")
    a(f"""
    s_lshl_b32 s58, s34, 8
    s_lshl_b32 s39, s36, 6
    s_add_u32 s58, s58, s39
    s_lshl_b32 s39, s37, 5
    s_add_u32 s58, s58, s39
    s_xor_b32 s59, s58, 32
    s_lshl_b32 s58, s58, 2
    s_lshl_b32 s59, s59, 2
    s_cmp_eq_u32 s64, 0
    s_cselect_b32 s39, {WS_ST}, {WS_ST+16384}
    s_add_u32 s58, s58, s39
    s_add_u32 s59, s59, s39
    s_add_u32 s61, s58, 8192
    s_add_u32 s63, s59, 8192
    v_and_b32 v{RS+12}, 31, v1
    v_lshlrev_b32 v{RS+12}, 2, v{RS+12}   ; (l%32)*4
    v_lshlrev_b32 v{RS+13}, 4, v3         ; h*16
    v_mov_b32 v{RS+14}, 0
    s_mov_b32 s62, 0
    s_cmp_lt_u32 s66, 1280
    s_cbranch_scc1 K1_MAIN_N
    s_cmp_ge_u32 s66, 1920
    s_cbranch_scc1 K1_MAIN_N
    """)
    def reads(ks, s, p):
        buf = ks % 3
        offA = buf*32768 if buf < 2 else 0
        F = FR[p]
        for mi in range(2):
            va = vA[mi][s] if buf < 2 else vA2[mi][s]
            a(f"ds_read_b128 v[{F+4*mi}:{F+4*mi+3}], v{va} offset:{offA}")
        for ni in range(2):
            for t in range(2):
                a(f"ds_read_b64_tr_b16 v[{F+8+4*ni+2*t}:{F+9+4*ni+2*t}], v{vB[ni]} offset:{buf*16384+s*2048+t*512}")
    def mfma1(p, vmode, mi, ni):
        F = FR[p]
        A = f"v[{F+4*mi}:{F+4*mi+3}]"; B = f"v[{F+8+4*ni}:{F+8+4*ni+3}]"
        c = acc(mi, ni)
        if vmode: a(f"v_mfma_f32_32x32x16_bf16 v[{c}:{c+15}], {A}, {B}, v[{c}:{c+15}]")
        else:     a(f"v_mfma_f32_32x32x16_bf16 v[{c}:{c+15}], {B}, {A}, v[{c}:{c+15}]")
    import os
    K1EXP = os.environ.get('K1EXP', '')
    def rowstat(p, d):
        if 'norow' in K1EXP: return
        r = FR[p] + d
        a(f"v_lshlrev_b32 v{RS+8}, 16, v{r}")
        a(f"v_and_b32 v{RS+9}, 0xffff0000, v{r}")
        a(f"v_add_f32 v{RS}, v{RS}, v{RS+8}")
        a(f"v_add_f32 v{RS+1}, v{RS+1}, v{RS+9}")
        a(f"v_fmac_f32 v{RS+2}, v{RS+8}, v{RS+8}")
        a(f"v_fmac_f32 v{RS+3}, v{RS+9}, v{RS+9}")
    def colstat(p):
        if 'nocol' in K1EXP: return
        for ni in range(2):
            for d in range(4):
                r = FR[p] + 8 + 4*ni + d
                a(f"v_lshlrev_b32 v{RS+10}, 16, v{r}")
                a(f"v_and_b32 v{RS+11}, 0xffff0000, v{r}")
                a(f"v_add_f32 v{RS+4+2*ni}, v{RS+4+2*ni}, v{RS+10}")
                a(f"v_add_f32 v{RS+5+2*ni}, v{RS+5+2*ni}, v{RS+11}")
    def rne(r):
        a(f"v_cvt_pk_bf16_f32 v{r}, v{r}, v{r}")
        a(f"v_lshlrev_b32 v{r}, 16, v{r}")
    def stat_loads(vmode):
        if vmode:
            for mi in range(2):
                for g in range(4):
                    r = ST + 4 + 8*(mi*4+g)
                    a(f"buffer_load_dwordx4 v[{r}:{r+3}], v{RS+13}, s[20:23], s{58+mi} offen offset:{32*g} sc1")
                    a(f"buffer_load_dwordx4 v[{r+4}:{r+7}], v{RS+13}, s[20:23], s{61+2*mi} offen offset:{32*g} sc1")
        else:
            for mi in range(2):
                a(f"buffer_load_dword v{ST+2*mi}, v{RS+12}, s[20:23], s{58+mi} offen sc1")
                a(f"buffer_load_dword v{ST+2*mi+1}, v{RS+12}, s[20:23], s{61+2*mi} offen sc1")
    def mainloop(vmode):
        tag = "V" if vmode else "N"
        a("s_waitcnt vmcnt(6)")
        a("s_barrier")
        stamp(a, 1)
        reads(0, 0, 0)
        step = 0
        for ks in range(NKS):
            for s in range(4):
                p = step % 2
                if s < 3:
                    reads(ks, s+1, 1-p)
                    a("s_waitcnt lgkmcnt(6)")
                else:
                    if ks + 1 < NKS:
                        a(f"s_waitcnt vmcnt({6 if ks+2 < NKS else 0}) lgkmcnt(0)")
                        a("s_barrier")
                        if ks == 7:
                            a(f"global_load_dword v{RS+15}, v{RS+14}, s[52:53] sc1")
                        if ks == 8:
                            a(f"v_readfirstlane_b32 s39, v{RS+15}")
                            a(f"s_cmp_lt_u32 s39, {NARRIVE}")
                            a(f"s_cbranch_scc1 K1_NOTREADY_{tag}")
                            stat_loads(vmode)
                            a("s_mov_b32 s62, 1")
                            a(f"s_branch K1_READY1_{tag}")
                            a.label(f"K1_NOTREADY_{tag}")
                            a(f"global_load_dword v{RS+15}, v{RS+14}, s[52:53] sc1")
                            a.label(f"K1_READY1_{tag}")
                        reads(ks+1, 0, 1-p)
                    else:
                        a("s_waitcnt lgkmcnt(0)")
                k_ = 0
                for mi in range(2):
                    for ni in range(2):
                        mfma1(p, vmode, mi, ni)
                lb = a.newlabel("K1_CS")
                a(f"s_cmp_lg_u32 s36, {s}")
                a(f"s_cbranch_scc1 {lb}")
                colstat(p)
                a.label(lb)
                if s < 3 and ks + 2 < NKS: dma_piece(ks+2, s)
                if ks == 8 and s == 0 and not vmode:
                    a(f"""
                    s_cmp_eq_u32 s64, 0
                    s_cbranch_scc1 K1_NOBIAS
                    s_mov_b32 s24, s10
                    s_and_b32 s25, s11, 0xffff
                    s_mov_b32 s26, {1536*2}
                    s_mov_b32 s27, 0x20000
                    s_lshl_b32 s60, s65, 7           ; block*64*2
                    v_lshlrev_b32 v60, 3, v3         ; h*8
                    """)
                    for ni in range(2):
                        for g in range(4):
                            r = ST + 36 + 2*(ni*4+g)
                            a(f"buffer_load_dwordx2 v[{r}:{r+1}], v60, s[24:27], s60 offen offset:{64*ni+16*g}")
                    a.label("K1_NOBIAS")
                step += 1
                if ks == NKS-1 and s == 1:
                    a(f"""
                    s_cmp_lg_u32 s62, 0
                    s_cbranch_scc1 K1_READY2_{tag}
                    s_waitcnt vmcnt(0)
                    v_readfirstlane_b32 s39, v{RS+15}
                    s_cmp_lt_u32 s39, {NARRIVE}
                    s_cbranch_scc1 K1_READY2_{tag}
                    """)
                    stat_loads(vmode)
                    a("s_mov_b32 s62, 1")
                    a.label(f"K1_READY2_{tag}")
                if s == 3 and ks in (0, 4): stamp(a, 2 + ks//4)
        stamp(a, 6)
        a(f"""
        v_add_f32 v{RS+4}, v{RS+4}, v{RS+5}
        v_add_f32 v{RS+6}, v{RS+6}, v{RS+7}
        v_mov_b32 v{RS+5}, v{RS+4}
        v_mov_b32 v{RS+7}, v{RS+6}
        s_nop 1
        v_permlane32_swap_b32 v{RS+4}, v{RS+5}
        v_permlane32_swap_b32 v{RS+6}, v{RS+7}
        s_nop 1
        v_add_f32 v{RS+4}, v{RS+4}, v{RS+5}
        v_add_f32 v{RS+6}, v{RS+6}, v{RS+7}
        v_cndmask_b32 v{RS+4}, v{RS+4}, v{RS+6}, s[48:49]
        s_lshl_b32 s39, s3, 8
        s_add_u32 s39, s39, {LDS_CSP}
        v_lshlrev_b32 v52, 2, v1
        v_add_u32 v53, s39, v52
        ds_write_b32 v53, v{RS+4}
        s_lshl_b32 s39, s37, 10
        s_add_u32 s39, s39, {LDS_CSP}
        v_add_u32 v53, s39, v52
        s_waitcnt lgkmcnt(0)
        s_barrier
        ds_read_b32 v56, v53
        ds_read_b32 v57, v53 offset:256
        ds_read_b32 v58, v53 offset:512
        ds_read_b32 v59, v53 offset:768
        s_cmp_lg_u32 s62, 0
        s_cbranch_scc1 K1_READY_{tag}
        s_mov_b32 s40, 0
        K1_SPIN_{tag}:
        global_load_dword v{RS+15}, v{RS+14}, s[52:53] sc1
        s_waitcnt vmcnt(0)
        v_readfirstlane_b32 s39, v{RS+15}
        s_cmp_ge_u32 s39, {NARRIVE}
        s_cbranch_scc1 K1_SPINDONE_{tag}
        s_sleep 4
        s_add_u32 s40, s40, 1
        s_cmp_lt_u32 s40, 0x40000
        s_cbranch_scc1 K1_SPIN_{tag}
        K1_SPINDONE_{tag}:
        """)
        stat_loads(vmode)
        a.label(f"K1_READY_{tag}")
        a(f"""
        s_waitcnt lgkmcnt(0)
        v_add_f32 v56, v56, v57
        v_add_f32 v58, v58, v59
        v_add_f32 v56, v56, v58
        """)
        if vmode:
            a(f"""
            v_mov_b32 v57, v56
            s_nop 1
            v_permlane32_swap_b32 v56, v57
            v_mov_b32 v{ST}, v56
            v_mov_b32 v{ST+1}, v57
            """)
        else:
            a(f"""
            s_lshl_b32 s39, s3, 8
            s_add_u32 s39, s39, {LDS_CS}
            v_add_u32 v53, s39, v52
            ds_write_b32 v53, v56
            v_lshlrev_b32 v55, 4, v3
            v_add_u32 v55, s39, v55          ; + h*16
            s_waitcnt lgkmcnt(0)
            """)
            for ni in range(2):
                for g in range(4):
                    r = ST + 4 + 4*(ni*4+g)
                    a(f"ds_read_b128 v[{r}:{r+3}], v55 offset:{128*ni+32*g}")
        a("s_waitcnt vmcnt(0) lgkmcnt(0)")
        stamp(a, 4)
    a.label("K1_MAIN_V")
    a("s_mov_b32 s48, 0")
    a("s_mov_b32 s49, -1")
    mainloop(True)
    a(f"""
    v_and_b32 v52, 31, v1
    s_sub_u32 s39, s66, 1280
    v_add_u32 v52, s39, v52
    s_lshl_b32 s40, s34, 3
    s_lshl_b32 s41, s36, 1
    s_add_u32 s40, s40, s41
    s_add_u32 s40, s40, s37
    s_xor_b32 s41, s40, 1
    s_mul_i32 s40, s40, 2560
    s_mul_i32 s41, s41, 2560
    s_add_u32 s40, s40, {WS_KV + 1280}
    s_add_u32 s41, s41, {WS_KV + 1280}
    s_movk_i32 s42, 3277
    s_mov_b32 s43, {163840}
    v_mul_u32_u24 v53, 20, v3        ; h*20
    """)
    for ni in range(2):
        a(f"""
        v_add_u32 v54, {ni*32}, v52
        v_mul_u32_u24 v55, s42, v54
        v_lshrrev_b32 v55, 16, v55       ; head
        v_mul_u32_u24 v56, 20, v55
        v_sub_u32 v56, v54, v56          ; d
        v_add_u32 v56, v56, v53          ; h*20+d
        v_mul_lo_u32 v55, v55, s43
        v_lshl_add_u32 v{58+ni}, v56, 4, v55
        """)
    t = FR[0]
    k = 0
    for mi in range(2):
        for ni in range(2):
            c = acc(mi, ni)
            for g in range(4):
                r = ST + 4 + 8*(mi*4+g)
                for j in range(4):
                    a(f"v_mul_f32 v{52+j}, v{r+4+j}, v{ST+ni}")
                for j in range(4):
                    a(f"v_fma_f32 v{c+4*g+j}, v{c+4*g+j}, v{r+j}, v{52+j}")
            for pv in range(2):
                r = t + 4*(k % 8); k += 1
                for d in range(4):
                    a(f"v_cvt_pk_bf16_f32 v{r+d}, v{c+8*pv+2*d}, v{c+8*pv+2*d+1}")
                a(f"buffer_store_dwordx4 v[{r}:{r+3}], v{58+ni}, s[20:23], s{40+mi} offen offset:{pv*640}")
    if STAMP:
        a("s_waitcnt vmcnt(0)")
        stamp(a, 5); stamp_end(a, 1, 7)
    a("s_endpgm")
    a.label("K1_MAIN_N")
    a("s_mov_b32 s48, 0")
    a("s_mov_b32 s49, -1")
    mainloop(False)
    a(f"""
    s_lshl_b32 s40, s34, 3
    s_lshl_b32 s41, s36, 1
    s_add_u32 s40, s40, s41
    s_add_u32 s40, s40, s37
    s_xor_b32 s41, s40, 1
    s_cmp_lg_u32 s64, 0
    s_cbranch_scc1 K1_EPI_H
    """)
    a(f"""
    s_cmp_lt_u32 s66, 640
    s_cselect_b32 s39, 0, 640
    s_cselect_b32 s43, {81920}, {163840}
    s_cselect_b32 s44, 1280, 2560
    s_cselect_b32 s45, {WS_QF}, {WS_KV}
    s_cselect_b32 s46, 0x{f32bits(QSCALE):08x}, 0x3f800000
    s_sub_u32 s39, s66, s39
    v_lshlrev_b32 v52, 2, v3
    v_add_u32 v52, s39, v52          ; + 4h
    s_mul_i32 s40, s40, s44
    s_mul_i32 s41, s41, s44
    s_add_u32 s40, s40, s45
    s_add_u32 s41, s41, s45          ; mi=1
    s_movk_i32 s42, 3277
    v_and_b32 v53, 31, v1            ; key
    v_lshlrev_b32 v54, 4, v53        ; key*16
    v_lshlrev_b32 v53, 3, v53        ; key*8
    v_add_u32 v53, 1024, v53         ; 1024 + key*8
    """)
    for q in range(4):
        a(f"v_mul_f32 v{ST+q}, s46, v{ST+q}")
    k = 0
    for ni in range(2):
        for g in range(4):
            a(f"""
            v_add_u32 v55, {ni*32+8*g}, v52      ; n'
            v_mul_u32_u24 v56, s42, v55
            v_lshrrev_b32 v56, 16, v56           ; head
            v_mul_u32_u24 v57, 20, v56
            v_sub_u32 v57, v55, v57              ; d
            v_lshrrev_b32 v58, 3, v57            ; d/8
            v_lshl_add_u32 v58, v58, 9, v54      ; (d/8)*512 + key*16
            v_and_b32 v59, 7, v57
            v_lshl_add_u32 v58, v59, 1, v58      ; + (d%8)*2
            v_cmp_gt_u32 vcc, 16, v57
            v_mul_lo_u32 v56, v56, s43
            s_nop 0
            v_cndmask_b32 v58, v53, v58, vcc
            v_add_u32 v58, v58, v56
            """)
            cs = ST + 4 + 4*(ni*4+g)
            for mi in range(2):
                c = acc(mi, ni) + 4*g
                r = FR[0] + 2*(k % 16); k += 1
                for j in range(4):
                    a(f"v_mul_f32 v{60+j}, v{ST+2*mi+1}, v{cs+j}")
                for j in range(4):
                    a(f"v_fma_f32 v{c+j}, v{c+j}, v{ST+2*mi}, v{60+j}")
                a(f"v_cvt_pk_bf16_f32 v{r}, v{c}, v{c+1}")
                a(f"v_cvt_pk_bf16_f32 v{r+1}, v{c+2}, v{c+3}")
                a(f"buffer_store_dwordx2 v[{r}:{r+1}], v58, s[20:23], s{40+mi} offen")
    if STAMP:
        a("s_waitcnt vmcnt(0)")
        stamp(a, 5); stamp_end(a, 1, 7)
    a("s_endpgm")
    a.label("K1_EPI_H")
    a(f"""
    v_and_b32 v52, 31, v1
    v_lshlrev_b32 v52, 4, v52
    v_lshl_add_u32 v52, v3, 3, v52   ; key*16 + h*8
    s_mul_i32 s40, s40, {136*1024}
    s_mul_i32 s41, s41, {136*1024}
    s_lshl_b32 s39, s65, 2
    s_add_u32 s39, s39, 40
    s_lshl_b32 s39, s39, 10
    s_add_u32 s39, s39, {WS_AF}
    s_add_u32 s40, s40, s39
    s_add_u32 s41, s41, s39
    v_mov_b32 v53, 0x{f32bits(GC1):08x}
    """)
    k = 0
    BI = ST + 52
    for ni in range(2):
        for g in range(4):
            cs = ST + 4 + 4*(ni*4+g)
            br = ST + 36 + 2*(ni*4+g)
            for d in range(2):
                a(f"v_lshlrev_b32 v{BI+2*d}, 16, v{br+d}")
                a(f"v_and_b32 v{BI+2*d+1}, 0xffff0000, v{br+d}")
            for mi in range(2):
                c = acc(mi, ni) + 4*g
                T = 54
                for j in range(4): a(f"v_fma_f32 v{T+4+j}, v{ST+2*mi+1}, v{cs+j}, v{BI+j}")
                for j in range(4): a(f"v_fma_f32 v{c+j}, v{c+j}, v{ST+2*mi}, v{T+4+j}")
                for j in range(4): a(f"v_mul_f32 v{T+j}, v{c+j}, v{c+j}")
                for j in range(4): a(f"v_fmaak_f32 v{T+j}, v{T+j}, v53, 0x{f32bits(GC0):08x}")
                for j in range(4): a(f"v_mul_f32 v{T+j}, v{T+j}, v{c+j}")
                for j in range(4): a(f"v_exp_f32 v{T+j}, v{T+j}")
                for j in range(4): a(f"v_add_f32 v{T+j}, 1.0, v{T+j}")
                for j in range(4): a(f"v_rcp_f32 v{T+j}, v{T+j}")
                for j in range(4): a(f"v_mul_f32 v{T+j}, v{T+j}, v{c+j}")
                r = FR[0] + 2*(k % 16); k += 1
                a(f"v_cvt_pk_bf16_f32 v{r}, v{T}, v{T+1}")
                a(f"v_cvt_pk_bf16_f32 v{r+1}, v{T+2}, v{T+3}")
                a(f"buffer_store_dwordx2 v[{r}:{r+1}], v52, s[20:23], s{40+mi} offen offset:{(g%2)*512 + (ni*2+g//2)*1024}")
    if STAMP:
        a("s_waitcnt vmcnt(0)")
        stamp(a, 5); stamp_end(a, 1, 7)
    a.label("K1_END")
    a("s_endpgm")
    gen_side(a)
    return a.text(), kernel_desc(name, 224, 102 if STAMP else 72), f"; @launch kernel={name} grid=(256,1,1) block=(512,1,1) lds={K1_LDS}"
```

```python
class Asm:
    def __init__(self):
        self.lines = []
        self._lbl = 0
    def __call__(self, s):
        import re
        for ln in s.strip("\n").split("\n"):
            t = ln.strip()
            m = re.match(r"s_cselect_b32 (s\d+), (0x[0-9a-fA-F]+|\d+), (0x[0-9a-fA-F]+|\d+)(\s*;.*)?$", t)
            if m and int(m.group(2), 0) > 64 and int(m.group(3), 0) > 64:
                self.lines.append(f"    s_mov_b32 {m.group(1)}, {m.group(3)}")
                self.lines.append(f"    s_cselect_b32 {m.group(1)}, {m.group(2)}, {m.group(1)}")
                continue
            self.lines.append("    " + t if not t.endswith(":") else t)
    def label(self, name):
        self.lines.append(f"{name}:")
    def newlabel(self, base="L"):
        self._lbl += 1
        return f"{base}_{self._lbl}"
    def comment(self, s):
        self.lines.append(f"    ; {s}")
    def text(self):
        return "\n".join(self.lines) + "\n"

def vr(a, n=1):
    return f"v{a}" if n == 1 else f"v[{a}:{a+n-1}]"
def sr(a, n=1):
    return f"s{a}" if n == 1 else f"s[{a}:{a+n-1}]"

def kernel_header(name):
    return f""".globl {name}
.p2align 8
.type {name},@function
{name}:
"""

def kernel_desc(name, vgpr, sgpr=102, accum=None):
    if accum is None:
        accum = (vgpr + 3)//4*4
    return f""".p2align 6
.amdhsa_kernel {name}
  .amdhsa_next_free_vgpr {vgpr}
  .amdhsa_next_free_sgpr {sgpr}
  .amdhsa_accum_offset {accum}
  .amdhsa_group_segment_fixed_size 0
  .amdhsa_kernarg_size 88
  .amdhsa_user_sgpr_count 2
  .amdhsa_user_sgpr_kernarg_segment_ptr 1
  .amdhsa_system_sgpr_workgroup_id_x 1
.end_amdhsa_kernel
"""

KA_X, KA_WQKV, KA_WO, KA_BX, KA_W1, KA_B1, KA_W2, KA_B2, KA_OUT, KA_DBG, KA_WS = [8*i for i in range(11)]

WS_ST = 0
WS_CNT = 0x8000
WS_QF = 0x500000
WS_KV = 0x780000
SO = 48
SN = SO + 96
WS_AF = 0xC90000
WS_WF = 0x1600000
WS_END = 0x1900000

def f32bits(x):
    import struct
    return struct.unpack("<I", struct.pack("<f", x))[0]

import os
STAMP = bool(int(os.environ.get("STAMP", "0")))
WS_STAMP = 0x2000000
def stamp(a, slot):
    if not STAMP: return
    a(f"s_memtime s[{96}:{97}]")
    if slot == 0: a("s_memrealtime s[98:99]")
    a("s_waitcnt lgkmcnt(0)")
    a(f"s_mov_b32 s{70+slot}, s96")
    if slot == 0: a("s_mov_b32 s68, s98")
def stamp_end(a, kidx, nslots, wave_sreg="s3", ws_lo="s6", ws_hi="s7", tmpv=2):
    if not STAMP: return
    a("s_memrealtime s[98:99]")
    a("s_waitcnt lgkmcnt(0)")
    a("s_sub_u32 s69, s98, s68")
    a("s_mov_b64 exec, 1")
    a(f"s_lshl_b32 s96, s2, 4")
    a(f"s_add_u32 s96, s96, {wave_sreg}")
    a(f"s_lshl_b32 s96, s96, 6")
    a(f"s_add_u32 s96, s96, {WS_STAMP + kidx*512*16*64}")
    a(f"s_add_u32 s96, {ws_lo}, s96")
    a(f"s_addc_u32 s97, {ws_hi}, 0")
    a(f"v_mov_b32 v{tmpv}, 0")
    for i in range(nslots):
        a(f"v_mov_b32 v{tmpv+1}, s{70+i}")
        a(f"global_store_dword v{tmpv}, v{tmpv+1}, s[96:97] offset:{4*i}")
    a(f"v_mov_b32 v{tmpv+1}, s69")
    a(f"global_store_dword v{tmpv}, v{tmpv+1}, s[96:97] offset:60")
    a(f"v_mov_b32 v{tmpv+1}, s68")
    a(f"global_store_dword v{tmpv}, v{tmpv+1}, s[96:97] offset:56")
```

```python
from asmlib import *
import math

LOG2E = 1.4426950408889634
QSCALE = (20 ** -0.5) * LOG2E
GC0 = -2.0 * math.sqrt(2.0/math.pi) * LOG2E
GC1 = GC0 * 0.044715

NKS = 10
NARRIVE = 40
LDS_B = 98304
LDS_ST = 98304 + 3*16384
LDS_CSP = LDS_ST + 4096
LDS_CS = LDS_CSP + 2048
K1_LDS = LDS_CS + 2048

def gen_side(a):
    a.label("K1_SIDE")
    a(f"""
    s_cmp_lg_u32 s2, 0
    s_cbranch_scc1 K1_SIDE_NZ
    v_lshlrev_b32 v5, 2, v0
    v_mov_b32 v6, 0
    s_mov_b32 s37, {WS_CNT}
    buffer_store_dword v6, v5, s[20:23], s37 offen
    K1_SIDE_NZ:
    s_lshl_b32 s35, s2, 3
    s_add_u32 s35, s35, s3
    s_mov_b32 s12, s50
    s_and_b32 s13, s51, 0xffff
    s_mov_b32 s14, {2048*1280}
    s_mov_b32 s15, 0x20000
    s_lshl_b32 s36, s35, 1
    v_lshrrev_b32 v3, 5, v1
    v_add_u32 v3, s36, v3
    v_and_b32 v4, 31, v1
    s_movk_i32 s36, 1280
    v_mul_lo_u32 v5, v3, s36
    v_lshl_add_u32 v5, v4, 3, v5     ; voff
    v_lshlrev_b32 v3, 2, v3
    """)
    L = 64; NIT = 4; T = 40
    for it in range(NIT):
        a(f"s_mov_b32 s37, {640*1280*it}")
        for j in range(5):
            a(f"buffer_load_dwordx2 v[{L+10*it+2*j}:{L+10*it+2*j+1}], v5, s[12:15], s37 offen offset:{256*j}")
    def rne(r):
        a(f"v_cvt_pk_bf16_f32 v{r}, v{r}, v{r}")
        a(f"v_lshlrev_b32 v{r}, 16, v{r}")
    a("v_mov_b32 v6, 0x3f803f80")
    for it in range(NIT):
        a(f"v_mov_b32 v{20+it}, 0")
        a(f"v_mov_b32 v{26+it}, 0")
    for it in range(NIT):
        a(f"s_waitcnt vmcnt({5*(NIT-1-it)})")
        for j_ in range(10):
            a(f"v_dot2_f32_bf16 v{20+it}, v{L+10*it+j_}, v6, v{20+it}")
            a(f"v_dot2_f32_bf16 v{26+it}, v{L+10*it+j_}, v{L+10*it+j_}, v{26+it}")
    regs = [20+it for it in range(NIT)] + [26+it for it in range(NIT)]
    a("s_nop 3")
    for sh in (8,4,2,1):
        for r in regs:
            a(f"v_add_f32_dpp v{r}, v{r}, v{r} row_ror:{sh} row_mask:0xf bank_mask:0xf")
    for k_, r in enumerate(regs):
        a(f"ds_swizzle_b32 v{32+k_}, v{r} offset:0x401F")
    a("s_waitcnt lgkmcnt(0)")
    for k_, r in enumerate(regs):
        a(f"v_add_f32 v{r}, v{r}, v{32+k_}")
    S = T; M = T+1; A0 = T+2; A1 = T+3; R = T+4; D0 = T+5; D1 = T+6; MB = T+7; VV = T+8
    a(f"v_mov_b32 v{S}, v20")
    a(f"v_mov_b32 v{A0}, v26")
    for it in range(1, NIT):
        a(f"v_cmp_eq_u32 vcc, {it}, v4")
        a("s_nop 1")
        a(f"v_cndmask_b32 v{S}, v{S}, v{20+it}, vcc")
        a(f"v_cndmask_b32 v{A0}, v{A0}, v{26+it}, vcc")
    a(f"v_mul_f32 v{M}, 0x{f32bits(1.0/640):08x}, v{S}")
    a(f"v_mul_f32 v{A0}, 0x{f32bits(1.0/640):08x}, v{A0}")
    a(f"v_fma_f32 v{VV}, -v{M}, v{M}, v{A0}")
    a(f"v_max_f32 v{VV}, 0, v{VV}")
    a(f"v_mov_b32 v{MB}, v{M}"); rne(MB)
    a(f"v_mov_b32 v{A0}, v{VV}"); rne(A0)
    a(f"v_add_f32 v{A0}, 0x{f32bits(1e-5):08x}, v{A0}"); rne(A0)
    a(f"v_sqrt_f32 v{A0}, v{A0}"); a("s_nop 0"); rne(A0)
    a(f"v_rcp_f32 v{R}, v{A0}"); a("s_nop 0")
    a(f"v_sub_f32 v{D0}, v{M}, v{MB}")
    a(f"v_mul_f32 v{D0}, v{D0}, v{R}"); rne(D0)
    a(f"v_mul_f32 v{D1}, v{VV}, v{R}")
    a(f"v_mul_f32 v{D1}, v{D1}, v{R}"); rne(D1)
    a(f"v_add_f32 v{D1}, 0x{f32bits(1e-5):08x}, v{D1}"); rne(D1)
    a(f"v_sqrt_f32 v{D1}, v{D1}"); a("s_nop 0"); rne(D1)
    a(f"v_rcp_f32 v{D1}, v{D1}"); a("s_nop 0")
    O = 50
    a(f"v_mov_b32 v{O}, v{R}")
    a(f"v_mul_f32 v{O+1}, v{R}, v{MB}")
    a(f"v_mul_f32 v{O+2}, v{R}, v{D1}")
    a(f"v_add_f32 v{O+3}, v{O+1}, v{D0}")
    a(f"v_mul_f32 v{O+3}, v{O+3}, v{D1}")
    a(f"v_sub_f32 v{O+1}, 0, v{O+1}")
    a(f"v_sub_f32 v{O+3}, 0, v{O+3}")
    a(f"v_mul_u32_u24 v7, {640*4}, v4")
    a(f"v_add_u32 v7, v7, v3")
    a(f"v_cmp_gt_u32 s[40:41], {NIT}, v4")
    a(f"v_cmp_gt_u32 vcc, {2048*4}, v7")
    a("s_and_b64 s[40:41], s[40:41], vcc")
    a("s_mov_b64 exec, s[40:41]")
    for q in range(4):
        a(f"s_mov_b32 s37, {WS_ST + 8192*q}")
        a(f"buffer_store_dword v{O+q}, v7, s[20:23], s37 offen sc1")
    a("s_mov_b64 exec, -1")
    stamp(a, 2)
    a(f"""
    s_waitcnt vmcnt(0)
    s_barrier
    s_cmp_lg_u32 s3, 0
    s_cbranch_scc1 K1_SIDE_RELAYOUT
    s_mov_b64 exec, 1
    v_mov_b32 v6, 0
    v_mov_b32 v7, 1
    global_atomic_add v6, v7, s[52:53] sc1
    s_mov_b64 exec, -1
    K1_SIDE_RELAYOUT:
    """)
    stamp(a, 3)
    a(f"""
    v_lshrrev_b32 v8, 5, v1          ; h
    v_and_b32 v4, 31, v1             ; n
    v_lshlrev_b32 v5, 4, v1
    v_add_u32 v6, 4096, v5
    s_movk_i32 s33, 1280
    K1_RL_LOOP:
    s_lshr_b32 s36, s35, 2           ; s
    s_and_b32 s37, s35, 3
    s_mul_i32 s37, s37, 5            ; t0
    s_cmp_lt_u32 s36, {SO}
    s_cselect_b32 s12, s54, s56
    s_cselect_b32 s13, s55, s57
    s_cselect_b32 s14, {640*1280}, {1536*1280}
    s_and_b32 s13, s13, 0xffff
    s_mov_b32 s15, 0x20000
    s_lshl_b32 s38, s36, 1
    v_add_u32 v3, s38, v8            ; G = 2s + h
    s_cmp_lt_u32 s36, {SO}
    s_cbranch_scc1 K1_RL_WO
    v_subrev_u32 v3, {2*SO}, v3
    v_lshlrev_b32 v3, 3, v3
    v_mov_b32 v7, 0
    s_branch K1_RL_GO
    K1_RL_WO:
    ; wo part: head = G/3, part = G%3, row0 = 20*head + 8*part ; rows j>=4 invalid when part==2
    v_mul_u32_u24 v7, 0x5556, v3
    v_lshrrev_b32 v7, 16, v7         ; head
    v_mul_u32_u24 v9, 3, v7
    v_sub_u32 v9, v3, v9             ; part
    v_mul_u32_u24 v3, 20, v7
    v_lshl_add_u32 v3, v9, 3, v3
    v_cmp_eq_u32 vcc, 2, v9
    v_mov_b32 v7, 0
    v_mov_b32 v9, 0x40000000
    v_cndmask_b32 v7, v7, v9, vcc
    K1_RL_GO:
    v_mul_lo_u32 v3, v3, s33
    v_lshl_add_u32 v3, v4, 1, v3     ; row0*1280 + n*2
    v_add_u32 v7, v7, v3
    s_lshl_b32 s38, s37, 6
    """)
    for j in range(8):
        a(f"s_add_u32 s{24+j}, s38, {1280*j}")
    for tt in range(5):
        for j in range(8):
            a(f"buffer_load_ushort v{10+8*tt+j}, v{3 if j < 4 else 7}, s[12:15], s{24+j} offen offset:{64*tt}")
    a(f"""
    s_mul_i32 s38, s36, 20
    s_add_u32 s38, s38, s37
    s_lshl_b32 s38, s38, 10
    s_add_u32 s38, s38, {WS_WF}
    """)
    for tt in range(5):
        a(f"s_waitcnt vmcnt({8*(4-tt)+tt})")
        for d in range(4):
            a(f"v_lshl_or_b32 v{52+4*(tt%3)+d}, v{10+8*tt+2*d+1}, 16, v{10+8*tt+2*d}")
        r = 52+4*(tt%3)
        a(f"buffer_store_dwordx4 v[{r}:{r+3}], v5, s[20:23], s38 offen offset:{1024*tt}" if tt < 4 else
          f"buffer_store_dwordx4 v[{r}:{r+3}], v6, s[20:23], s38 offen")
    a(f"""
    s_waitcnt vmcnt(0)
    s_add_u32 s35, s35, 320
    s_cmp_lt_u32 s35, {SN*4}
    s_cbranch_scc1 K1_RL_LOOP
    """)
    stamp(a, 1); stamp_end(a, 0, 4)
    a("s_endpgm")

def gen_k1():
    a = Asm()
    name = "k1_gemm_kernel"
    a.lines.append(kernel_header(name))
    vDA = [4,5,6,7]; vDB = [8,9]
    vA = [[10,11,12,13], [200,201,202,203]]
    vA2 = [[14,15,16,17], [204,205,206,207]]
    vB = [18,19]
    FR = [20, 36]
    ACC = 64
    ST = 128
    RS = 208
    def acc(mi, ni): return ACC + (mi*2+ni)*16
    a(f"""
    s_cmp_ge_u32 s2, 256
    s_cbranch_scc1 K1_END
    s_load_dwordx2 s[4:5], s[0:1], {KA_WQKV}
    s_load_dwordx2 s[6:7], s[0:1], {KA_WS}
    s_load_dwordx2 s[8:9], s[0:1], {KA_W1}
    s_load_dwordx2 s[10:11], s[0:1], {KA_B1}
    s_load_dwordx2 s[50:51], s[0:1], {KA_X}
    s_load_dwordx2 s[52:53], s[0:1], {KA_DBG}
    s_load_dwordx2 s[54:55], s[0:1], {KA_WO}
    s_load_dwordx2 s[56:57], s[0:1], {KA_W2}
    v_lshrrev_b32 v2, 6, v0
    v_and_b32 v1, 63, v0
    ; tile index T = (wg%8)*27 + (wg-40)/8 ; mh = T/108 ; rem = T%108 ; nt = rem/4 ; mt = mh*4 + rem%4
    s_and_b32 s38, s2, 7
    s_mul_i32 s38, s38, 27
    s_lshr_b32 s39, s2, 3
    s_sub_u32 s39, s39, 5
    s_add_u32 s38, s38, s39
    s_cmp_ge_u32 s38, 108
    s_cselect_b32 s39, 108, 0
    s_cselect_b32 s34, 4, 0
    s_sub_u32 s38, s38, s39
    s_lshr_b32 s35, s38, 2           ; nt
    s_and_b32 s38, s38, 3
    s_add_u32 s34, s34, s38          ; mt
    v_readfirstlane_b32 s3, v2
    s_and_b32 s36, s3, 3             ; wm
    s_lshr_b32 s37, s3, 2            ; wn
    s_waitcnt lgkmcnt(0)
    """)
    stamp(a, 0)
    a(f"""
    s_mov_b32 s20, s6
    s_and_b32 s21, s7, 0xffff
    s_mov_b32 s22, {WS_END}
    s_mov_b32 s23, 0x20000
    s_cmp_lt_u32 s2, 40
    s_cbranch_scc1 K1_SIDE
    s_mul_i32 s39, s34, {256*1280}
    s_add_u32 s12, s50, s39
    s_addc_u32 s13, s51, 0
    s_and_b32 s13, s13, 0xffff
    s_mov_b32 s14, {256*1280}
    s_mov_b32 s15, 0x20000
    s_cmp_lt_u32 s35, 24
    s_cselect_b32 s64, s37, 0
    s_sub_u32 s39, s35, 24
    s_lshl_b32 s39, s39, 1
    s_add_u32 s39, s39, 24
    s_add_u32 s39, s39, s37
    s_cmp_lt_u32 s35, 24
    s_cselect_b32 s65, s35, s39
    ; SRD_B s[16:19]
    s_cmp_eq_u32 s64, 0
    s_cselect_b32 s16, s4, s8
    s_cselect_b32 s17, s5, s9
    s_cselect_b32 s28, 3840, 3072
    s_cselect_b32 s18, {640*3840}, {640*3072}
    s_cselect_b32 s66, 0, 1920
    s_lshl_b32 s39, s65, 7
    s_add_u32 s16, s16, s39
    s_addc_u32 s17, s17, 0
    s_and_b32 s17, s17, 0xffff
    s_sub_u32 s18, s18, s39
    s_mov_b32 s19, 0x20000
    s_lshl_b32 s39, s65, 6
    s_add_u32 s66, s66, s39
    s_lshl_b32 s31, s28, 6           ; 64*ldb
    s_lshl_b32 s32, s3, 12           ; w*4096
    s_lshl_b32 s33, s3, 11
    s_add_u32 s33, s33, {LDS_B}
    v_lshrrev_b32 v3, 5, v1          ; h
    v_lshrrev_b32 v52, 3, v1         ; l/8
    v_and_b32 v53, 7, v1             ; c'
    v_lshrrev_b32 v54, 4, v1         ; l/16
    s_lshl_b32 s39, s3, 5            ; w*32 rows
    s_movk_i32 s40, 1280
    v_add_u32 v55, s39, v52
    v_mul_lo_u32 v55, v55, s40       ; row*1280 (i=0)
    v_xor_b32 v56, v53, v54          ; c (i even)
    v_xor_b32 v57, 4, v56            ; c (i odd)
    v_lshl_add_u32 v{vDA[0]}, v56, 4, v55
    v_lshl_add_u32 v{vDA[1]}, v57, 4, v55
    v_add_u32 v{vDA[1]}, {8*1280-1024}, v{vDA[1]}
    v_add_u32 v{vDA[2]}, {16*1280-2048}, v{vDA[0]}
    v_add_u32 v{vDA[3]}, {16*1280-2048}, v{vDA[1]}
    v_and_b32 v56, 1, v54            ; (l/16)&1
    v_lshlrev_b32 v56, 2, v56
    v_xor_b32 v56, v53, v56          ; c
    s_lshl_b32 s39, s36, 4           ; (w&3)*16 krows
    v_add_u32 v55, s39, v52          ; + l/8
    v_mul_lo_u32 v55, v55, s28
    v_lshl_add_u32 v{vDB[0]}, v56, 4, v55
    s_lshl_b32 s39, s28, 3
    s_sub_u32 s39, s39, 1024
    v_add_u32 v{vDB[1]}, s39, v{vDB[0]}
    s_mov_b32 s29, 0
    s_mov_b32 s30, 0
    """)
    def dma_piece(ks, piece):
        buf = ks % 3
        if piece < 2:
            a(f"s_add_u32 m0, s32, {buf*32768}")
            a("s_nop 0")
            for i in (2*piece, 2*piece+1):
                a(f"buffer_load_dwordx4 v{vDA[i]}, s[12:15], s29 offen offset:{i*1024} lds")
            if piece == 1: a("s_add_u32 s29, s29, 128")
        else:
            a(f"s_add_u32 m0, s33, {buf*16384}")
            a("s_nop 0")
            for i in range(2):
                a(f"buffer_load_dwordx4 v{vDB[i]}, s[16:19], s30 offen offset:{i*1024} lds")
            a("s_add_u32 s30, s30, s31")
    def dma(ks):
        for p_ in range(3): dma_piece(ks, p_)
    dma(0)
    a("s_barrier")
    dma(1)
    a(f"""
    v_and_b32 v52, 31, v1            ; r
    s_lshl_b32 s39, s36, 6           ; wm*64
    s_lshl_b32 s40, s37, 5
    s_add_u32 s39, s39, s40          ; + wn*32
    v_add_u32 v53, s39, v52
    v_lshlrev_b32 v53, 7, v53
    v_lshrrev_b32 v54, 1, v52
    v_and_b32 v54, 7, v54            ; f
    """)
    for s in range(4):
        a(f"""
        v_add_u32 v55, {2*s}, v3
        v_xor_b32 v55, v55, v54
        v_lshl_add_u32 v{vA[0][s]}, v55, 4, v53
        v_xor_b32 v{vA[1][s]}, 0x1000, v{vA[0][s]}
        v_add_u32 v{vA2[0][s]}, 0x10000, v{vA[0][s]}
        v_add_u32 v{vA2[1][s]}, 0x10000, v{vA[1][s]}
        """)
    a(f"""
    v_lshrrev_b32 v52, 4, v1         ; gq
    v_and_b32 v53, 15, v1            ; i
    v_lshrrev_b32 v54, 2, v53        ; i/4
    v_lshrrev_b32 v55, 1, v52        ; gq/2
    v_lshl_add_u32 v55, v55, 3, v54
    v_lshlrev_b32 v55, 7, v55        ; *128
    v_and_b32 v56, 1, v53
    v_lshl_add_u32 v55, v56, 3, v55  ; + (i%2)*8
    s_lshl_b32 s39, s37, 13          ; wn*8192
    s_add_u32 s39, s39, {LDS_B}
    v_add_u32 v55, s39, v55
    v_and_b32 v56, 1, v52            ; gq%2
    v_lshlrev_b32 v56, 1, v56
    v_bfe_u32 v57, v53, 1, 1         ; (i%4)/2
    v_add_u32 v56, v56, v57
    v_bfe_u32 v54, v53, 3, 1
    v_lshlrev_b32 v54, 2, v54        ; ((i>>3)&1)<<2
    """)
    for ni in range(2):
        a(f"""
        v_add_u32 v57, {ni*4}, v56
        v_xor_b32 v57, v57, v54
        v_lshl_add_u32 v{vB[ni]}, v57, 4, v55
        """)
    for r in range(64):
        a(f"v_mov_b32 v{ACC+r}, 0")
    for r in range(8):
        a(f"v_mov_b32 v{RS+r}, 0")
    a(f"""
    s_lshl_b32 s58, s34, 8
    s_lshl_b32 s39, s36, 6
    s_add_u32 s58, s58, s39
    s_lshl_b32 s39, s37, 5
    s_add_u32 s58, s58, s39
    s_xor_b32 s59, s58, 32
    s_lshl_b32 s58, s58, 2
    s_lshl_b32 s59, s59, 2
    s_cmp_eq_u32 s64, 0
    s_cselect_b32 s39, {WS_ST}, {WS_ST+16384}
    s_add_u32 s58, s58, s39
    s_add_u32 s59, s59, s39
    s_add_u32 s61, s58, 8192
    s_add_u32 s63, s59, 8192
    v_and_b32 v{RS+12}, 31, v1
    v_lshlrev_b32 v{RS+12}, 2, v{RS+12}   ; (l%32)*4
    v_lshlrev_b32 v{RS+13}, 4, v3         ; h*16
    v_mov_b32 v{RS+14}, 0
    s_mov_b32 s62, 0
    s_cmp_lt_u32 s66, 1280
    s_cbranch_scc1 K1_MAIN_N
    s_cmp_ge_u32 s66, 1920
    s_cbranch_scc1 K1_MAIN_N
    """)
    def reads(ks, s, p):
        buf = ks % 3
        offA = buf*32768 if buf < 2 else 0
        F = FR[p]
        for mi in range(2):
            va = vA[mi][s] if buf < 2 else vA2[mi][s]
            a(f"ds_read_b128 v[{F+4*mi}:{F+4*mi+3}], v{va} offset:{offA}")
        for ni in range(2):
            for t in range(2):
                a(f"ds_read_b64_tr_b16 v[{F+8+4*ni+2*t}:{F+9+4*ni+2*t}], v{vB[ni]} offset:{buf*16384+s*2048+t*512}")
    def mfma1(p, vmode, mi, ni):
        F = FR[p]
        A = f"v[{F+4*mi}:{F+4*mi+3}]"; B = f"v[{F+8+4*ni}:{F+8+4*ni+3}]"
        c = acc(mi, ni)
        if vmode: a(f"v_mfma_f32_32x32x16_bf16 v[{c}:{c+15}], {A}, {B}, v[{c}:{c+15}]")
        else:     a(f"v_mfma_f32_32x32x16_bf16 v[{c}:{c+15}], {B}, {A}, v[{c}:{c+15}]")
    import os
    K1EXP = os.environ.get('K1EXP', '')
    def rowstat(p, d):
        if 'norow' in K1EXP: return
        r = FR[p] + d
        a(f"v_lshlrev_b32 v{RS+8}, 16, v{r}")
        a(f"v_and_b32 v{RS+9}, 0xffff0000, v{r}")
        a(f"v_add_f32 v{RS}, v{RS}, v{RS+8}")
        a(f"v_add_f32 v{RS+1}, v{RS+1}, v{RS+9}")
        a(f"v_fmac_f32 v{RS+2}, v{RS+8}, v{RS+8}")
        a(f"v_fmac_f32 v{RS+3}, v{RS+9}, v{RS+9}")
    def colstat(p):
        if 'nocol' in K1EXP: return
        for ni in range(2):
            for d in range(4):
                r = FR[p] + 8 + 4*ni + d
                a(f"v_lshlrev_b32 v{RS+10}, 16, v{r}")
                a(f"v_and_b32 v{RS+11}, 0xffff0000, v{r}")
                a(f"v_add_f32 v{RS+4+2*ni}, v{RS+4+2*ni}, v{RS+10}")
                a(f"v_add_f32 v{RS+5+2*ni}, v{RS+5+2*ni}, v{RS+11}")
    def rne(r):
        a(f"v_cvt_pk_bf16_f32 v{r}, v{r}, v{r}")
        a(f"v_lshlrev_b32 v{r}, 16, v{r}")
    def stat_loads(vmode):
        if vmode:
            for mi in range(2):
                for g in range(4):
                    r = ST + 4 + 8*(mi*4+g)
                    a(f"buffer_load_dwordx4 v[{r}:{r+3}], v{RS+13}, s[20:23], s{58+mi} offen offset:{32*g} sc1")
                    a(f"buffer_load_dwordx4 v[{r+4}:{r+7}], v{RS+13}, s[20:23], s{61+2*mi} offen offset:{32*g} sc1")
        else:
            for mi in range(2):
                a(f"buffer_load_dword v{ST+2*mi}, v{RS+12}, s[20:23], s{58+mi} offen sc1")
                a(f"buffer_load_dword v{ST+2*mi+1}, v{RS+12}, s[20:23], s{61+2*mi} offen sc1")
    def mainloop(vmode):
        tag = "V" if vmode else "N"
        a("s_waitcnt vmcnt(6)")
        a("s_barrier")
        stamp(a, 1)
        reads(0, 0, 0)
        step = 0
        for ks in range(NKS):
            for s in range(4):
                p = step % 2
                if s < 3:
                    reads(ks, s+1, 1-p)
                    a("s_waitcnt lgkmcnt(6)")
                else:
                    if ks + 1 < NKS:
                        a(f"s_waitcnt vmcnt({6 if ks+2 < NKS else 0}) lgkmcnt(0)")
                        a("s_barrier")
                        if ks == 7:
                            a(f"global_load_dword v{RS+15}, v{RS+14}, s[52:53] sc1")
                        if ks == 8:
                            a(f"v_readfirstlane_b32 s39, v{RS+15}")
                            a(f"s_cmp_lt_u32 s39, {NARRIVE}")
                            a(f"s_cbranch_scc1 K1_NOTREADY_{tag}")
                            stat_loads(vmode)
                            a("s_mov_b32 s62, 1")
                            a(f"s_branch K1_READY1_{tag}")
                            a.label(f"K1_NOTREADY_{tag}")
                            a(f"global_load_dword v{RS+15}, v{RS+14}, s[52:53] sc1")
                            a.label(f"K1_READY1_{tag}")
                        reads(ks+1, 0, 1-p)
                    else:
                        a("s_waitcnt lgkmcnt(0)")
                k_ = 0
                for mi in range(2):
                    for ni in range(2):
                        mfma1(p, vmode, mi, ni)
                lb = a.newlabel("K1_CS")
                a(f"s_cmp_lg_u32 s36, {s}")
                a(f"s_cbranch_scc1 {lb}")
                colstat(p)
                a.label(lb)
                if s < 3 and ks + 2 < NKS: dma_piece(ks+2, s)
                if ks == 8 and s == 0 and not vmode:
                    a(f"""
                    s_cmp_eq_u32 s64, 0
                    s_cbranch_scc1 K1_NOBIAS
                    s_mov_b32 s24, s10
                    s_and_b32 s25, s11, 0xffff
                    s_mov_b32 s26, {1536*2}
                    s_mov_b32 s27, 0x20000
                    s_lshl_b32 s60, s65, 7           ; block*64*2
                    v_lshlrev_b32 v60, 3, v3         ; h*8
                    """)
                    for ni in range(2):
                        for g in range(4):
                            r = ST + 36 + 2*(ni*4+g)
                            a(f"buffer_load_dwordx2 v[{r}:{r+1}], v60, s[24:27], s60 offen offset:{64*ni+16*g}")
                    a.label("K1_NOBIAS")
                step += 1
                if ks == NKS-1 and s == 1:
                    a(f"""
                    s_cmp_lg_u32 s62, 0
                    s_cbranch_scc1 K1_READY2_{tag}
                    s_waitcnt vmcnt(0)
                    v_readfirstlane_b32 s39, v{RS+15}
                    s_cmp_lt_u32 s39, {NARRIVE}
                    s_cbranch_scc1 K1_READY2_{tag}
                    """)
                    stat_loads(vmode)
                    a("s_mov_b32 s62, 1")
                    a.label(f"K1_READY2_{tag}")
                if s == 3 and ks in (0, 4): stamp(a, 2 + ks//4)
        stamp(a, 6)
        a(f"""
        v_add_f32 v{RS+4}, v{RS+4}, v{RS+5}
        v_add_f32 v{RS+6}, v{RS+6}, v{RS+7}
        v_mov_b32 v{RS+5}, v{RS+4}
        v_mov_b32 v{RS+7}, v{RS+6}
        s_nop 1
        v_permlane32_swap_b32 v{RS+4}, v{RS+5}
        v_permlane32_swap_b32 v{RS+6}, v{RS+7}
        s_nop 1
        v_add_f32 v{RS+4}, v{RS+4}, v{RS+5}
        v_add_f32 v{RS+6}, v{RS+6}, v{RS+7}
        v_cndmask_b32 v{RS+4}, v{RS+4}, v{RS+6}, s[48:49]
        s_lshl_b32 s39, s3, 8
        s_add_u32 s39, s39, {LDS_CSP}
        v_lshlrev_b32 v52, 2, v1
        v_add_u32 v53, s39, v52
        ds_write_b32 v53, v{RS+4}
        s_lshl_b32 s39, s37, 10
        s_add_u32 s39, s39, {LDS_CSP}
        v_add_u32 v53, s39, v52
        s_waitcnt lgkmcnt(0)
        s_barrier
        ds_read_b32 v56, v53
        ds_read_b32 v57, v53 offset:256
        ds_read_b32 v58, v53 offset:512
        ds_read_b32 v59, v53 offset:768
        s_cmp_lg_u32 s62, 0
        s_cbranch_scc1 K1_READY_{tag}
        s_mov_b32 s40, 0
        K1_SPIN_{tag}:
        global_load_dword v{RS+15}, v{RS+14}, s[52:53] sc1
        s_waitcnt vmcnt(0)
        v_readfirstlane_b32 s39, v{RS+15}
        s_cmp_ge_u32 s39, {NARRIVE}
        s_cbranch_scc1 K1_SPINDONE_{tag}
        s_sleep 4
        s_add_u32 s40, s40, 1
        s_cmp_lt_u32 s40, 0x40000
        s_cbranch_scc1 K1_SPIN_{tag}
        K1_SPINDONE_{tag}:
        """)
        stat_loads(vmode)
        a.label(f"K1_READY_{tag}")
        a(f"""
        s_waitcnt lgkmcnt(0)
        v_add_f32 v56, v56, v57
        v_add_f32 v58, v58, v59
        v_add_f32 v56, v56, v58
        """)
        if vmode:
            a(f"""
            v_mov_b32 v57, v56
            s_nop 1
            v_permlane32_swap_b32 v56, v57
            v_mov_b32 v{ST}, v56
            v_mov_b32 v{ST+1}, v57
            """)
        else:
            a(f"""
            s_lshl_b32 s39, s3, 8
            s_add_u32 s39, s39, {LDS_CS}
            v_add_u32 v53, s39, v52
            ds_write_b32 v53, v56
            v_lshlrev_b32 v55, 4, v3
            v_add_u32 v55, s39, v55          ; + h*16
            s_waitcnt lgkmcnt(0)
            """)
            for ni in range(2):
                for g in range(4):
                    r = ST + 4 + 4*(ni*4+g)
                    a(f"ds_read_b128 v[{r}:{r+3}], v55 offset:{128*ni+32*g}")
        a("s_waitcnt vmcnt(0) lgkmcnt(0)")
        stamp(a, 4)
    a.label("K1_MAIN_V")
    a("s_mov_b32 s48, 0")
    a("s_mov_b32 s49, -1")
    mainloop(True)
    a(f"""
    v_and_b32 v52, 31, v1
    s_sub_u32 s39, s66, 1280
    v_add_u32 v52, s39, v52
    s_lshl_b32 s40, s34, 3
    s_lshl_b32 s41, s36, 1
    s_add_u32 s40, s40, s41
    s_add_u32 s40, s40, s37
    s_xor_b32 s41, s40, 1
    s_mul_i32 s40, s40, 2560
    s_mul_i32 s41, s41, 2560
    s_add_u32 s40, s40, {WS_KV + 1280}
    s_add_u32 s41, s41, {WS_KV + 1280}
    s_movk_i32 s42, 3277
    s_mov_b32 s43, {163840}
    v_mul_u32_u24 v53, 20, v3        ; h*20
    """)
    for ni in range(2):
        a(f"""
        v_add_u32 v54, {ni*32}, v52
        v_mul_u32_u24 v55, s42, v54
        v_lshrrev_b32 v55, 16, v55       ; head
        v_mul_u32_u24 v56, 20, v55
        v_sub_u32 v56, v54, v56          ; d
        v_add_u32 v56, v56, v53          ; h*20+d
        v_mul_lo_u32 v55, v55, s43
        v_lshl_add_u32 v{58+ni}, v56, 4, v55
        """)
    t = FR[0]
    k = 0
    for mi in range(2):
        for ni in range(2):
            c = acc(mi, ni)
            for g in range(4):
                r = ST + 4 + 8*(mi*4+g)
                for j in range(4):
                    a(f"v_mul_f32 v{52+j}, v{r+4+j}, v{ST+ni}")
                for j in range(4):
                    a(f"v_fma_f32 v{c+4*g+j}, v{c+4*g+j}, v{r+j}, v{52+j}")
            for pv in range(2):
                r = t + 4*(k % 8); k += 1
                for d in range(4):
                    a(f"v_cvt_pk_bf16_f32 v{r+d}, v{c+8*pv+2*d}, v{c+8*pv+2*d+1}")
                a(f"buffer_store_dwordx4 v[{r}:{r+3}], v{58+ni}, s[20:23], s{40+mi} offen offset:{pv*640}")
    if STAMP:
        a("s_waitcnt vmcnt(0)")
        stamp(a, 5); stamp_end(a, 1, 7)
    a("s_endpgm")
    a.label("K1_MAIN_N")
    a("s_mov_b32 s48, 0")
    a("s_mov_b32 s49, -1")
    mainloop(False)
    a(f"""
    s_lshl_b32 s40, s34, 3
    s_lshl_b32 s41, s36, 1
    s_add_u32 s40, s40, s41
    s_add_u32 s40, s40, s37
    s_xor_b32 s41, s40, 1
    s_cmp_lg_u32 s64, 0
    s_cbranch_scc1 K1_EPI_H
    """)
    a(f"""
    s_cmp_lt_u32 s66, 640
    s_cselect_b32 s39, 0, 640
    s_cselect_b32 s43, {81920}, {163840}
    s_cselect_b32 s44, 1280, 2560
    s_cselect_b32 s45, {WS_QF}, {WS_KV}
    s_cselect_b32 s46, 0x{f32bits(QSCALE):08x}, 0x3f800000
    s_sub_u32 s39, s66, s39
    v_lshlrev_b32 v52, 2, v3
    v_add_u32 v52, s39, v52          ; + 4h
    s_mul_i32 s40, s40, s44
    s_mul_i32 s41, s41, s44
    s_add_u32 s40, s40, s45
    s_add_u32 s41, s41, s45          ; mi=1
    s_movk_i32 s42, 3277
    v_and_b32 v53, 31, v1            ; key
    v_lshlrev_b32 v54, 4, v53        ; key*16
    v_lshlrev_b32 v53, 3, v53        ; key*8
    v_add_u32 v53, 1024, v53         ; 1024 + key*8
    """)
    for q in range(4):
        a(f"v_mul_f32 v{ST+q}, s46, v{ST+q}")
    k = 0
    for ni in range(2):
        for g in range(4):
            a(f"""
            v_add_u32 v55, {ni*32+8*g}, v52      ; n'
            v_mul_u32_u24 v56, s42, v55
            v_lshrrev_b32 v56, 16, v56           ; head
            v_mul_u32_u24 v57, 20, v56
            v_sub_u32 v57, v55, v57              ; d
            v_lshrrev_b32 v58, 3, v57            ; d/8
            v_lshl_add_u32 v58, v58, 9, v54      ; (d/8)*512 + key*16
            v_and_b32 v59, 7, v57
            v_lshl_add_u32 v58, v59, 1, v58      ; + (d%8)*2
            v_cmp_gt_u32 vcc, 16, v57
            v_mul_lo_u32 v56, v56, s43
            s_nop 0
            v_cndmask_b32 v58, v53, v58, vcc
            v_add_u32 v58, v58, v56
            """)
            cs = ST + 4 + 4*(ni*4+g)
            for mi in range(2):
                c = acc(mi, ni) + 4*g
                r = FR[0] + 2*(k % 16); k += 1
                for j in range(4):
                    a(f"v_mul_f32 v{60+j}, v{ST+2*mi+1}, v{cs+j}")
                for j in range(4):
                    a(f"v_fma_f32 v{c+j}, v{c+j}, v{ST+2*mi}, v{60+j}")
                a(f"v_cvt_pk_bf16_f32 v{r}, v{c}, v{c+1}")
                a(f"v_cvt_pk_bf16_f32 v{r+1}, v{c+2}, v{c+3}")
                a(f"buffer_store_dwordx2 v[{r}:{r+1}], v58, s[20:23], s{40+mi} offen")
    if STAMP:
        a("s_waitcnt vmcnt(0)")
        stamp(a, 5); stamp_end(a, 1, 7)
    a("s_endpgm")
    a.label("K1_EPI_H")
    a(f"""
    v_and_b32 v52, 31, v1
    v_lshlrev_b32 v52, 4, v52
    v_lshl_add_u32 v52, v3, 3, v52   ; key*16 + h*8
    s_mul_i32 s40, s40, {SN*1024}
    s_mul_i32 s41, s41, {SN*1024}
    s_lshl_b32 s39, s65, 2
    s_add_u32 s39, s39, {SO}
    s_lshl_b32 s39, s39, 10
    s_add_u32 s39, s39, {WS_AF}
    s_add_u32 s40, s40, s39
    s_add_u32 s41, s41, s39
    v_mov_b32 v53, 0x{f32bits(GC1):08x}
    """)
    k = 0
    BI = ST + 52
    for ni in range(2):
        for g in range(4):
            cs = ST + 4 + 4*(ni*4+g)
            br = ST + 36 + 2*(ni*4+g)
            for d in range(2):
                a(f"v_lshlrev_b32 v{BI+2*d}, 16, v{br+d}")
                a(f"v_and_b32 v{BI+2*d+1}, 0xffff0000, v{br+d}")
            for mi in range(2):
                c = acc(mi, ni) + 4*g
                T = 54
                for j in range(4): a(f"v_fma_f32 v{T+4+j}, v{ST+2*mi+1}, v{cs+j}, v{BI+j}")
                for j in range(4): a(f"v_fma_f32 v{c+j}, v{c+j}, v{ST+2*mi}, v{T+4+j}")
                for j in range(4): a(f"v_mul_f32 v{T+j}, v{c+j}, v{c+j}")
                for j in range(4): a(f"v_fmaak_f32 v{T+j}, v{T+j}, v53, 0x{f32bits(GC0):08x}")
                for j in range(4): a(f"v_mul_f32 v{T+j}, v{T+j}, v{c+j}")
                for j in range(4): a(f"v_exp_f32 v{T+j}, v{T+j}")
                for j in range(4): a(f"v_add_f32 v{T+j}, 1.0, v{T+j}")
                for j in range(4): a(f"v_rcp_f32 v{T+j}, v{T+j}")
                for j in range(4): a(f"v_mul_f32 v{T+j}, v{T+j}, v{c+j}")
                r = FR[0] + 2*(k % 16); k += 1
                a(f"v_cvt_pk_bf16_f32 v{r}, v{T}, v{T+1}")
                a(f"v_cvt_pk_bf16_f32 v{r+1}, v{T+2}, v{T+3}")
                a(f"buffer_store_dwordx2 v[{r}:{r+1}], v52, s[20:23], s{40+mi} offen offset:{(g%2)*512 + (ni*2+g//2)*1024}")
    if STAMP:
        a("s_waitcnt vmcnt(0)")
        stamp(a, 5); stamp_end(a, 1, 7)
    a.label("K1_END")
    a("s_endpgm")
    gen_side(a)
    return a.text(), kernel_desc(name, 224, 102 if STAMP else 72), f"; @launch kernel={name} grid=(256,1,1) block=(512,1,1) lds={K1_LDS}"
```

```python
from asmlib import *
import os

K2_RING = 40960
K2_FLAG = 40960
K2_RED = 41984
K2_LDS = K2_RED + 81920

def gen_k2():
    a = Asm()
    name = "k2_attn_kernel"
    a.lines.append(kernel_header(name))
    NU = int(os.environ.get("K2NU", "1")); NAW = 8 // NU
    if NU == 2:
        Q = [4, 10]; QH = [8, 14]; NC = [16, 32]; O = [48, 64]; S = [[80, 96], [112, 128]]; P = [144, 152]
        KLb = [160, 166]; KHb = [164, 170]; V = [172, 180]
        vKa = 188; vKHa = 189; vVa = 190; vDma = 191; T = 192
        NVG = 204
    else:
        Q = [4]; QH = [8]; NC = [16]; O = [32]; S = [[48, 64]]; P = [80]
        KLb = [88, 10]; KHb = [92, 14]; V = [96, 104]
        vKa = 112; vKHa = 113; vVa = 114; vDma = 115; T = 116
        NVG = 168
    DPR = 8 // NAW
    a(f"""
    s_cmp_ge_u32 s2, 256
    s_cbranch_scc1 K2_END
    s_load_dwordx2 s[6:7], s[0:1], {KA_WS}
    s_load_dwordx2 s[8:9], s[0:1], {KA_X}
    s_load_dwordx2 s[10:11], s[0:1], {KA_B2}
    s_load_dwordx2 s[4:5], s[0:1], {KA_OUT}
    v_lshrrev_b32 v2, 6, v0
    v_and_b32 v1, 63, v0
    s_and_b32 s34, s2, 7
    s_lshl_b32 s34, s34, 2
    s_bfe_u32 s35, s2, 0x20003       ; (wg>>3)&3
    s_add_u32 s34, s34, s35          ; head
    s_lshr_b32 s35, s2, 5            ; qb
    s_lshl_b32 s54, s35, 8
    s_add_u32 s54, s54, {WS_CNT}
    v_readfirstlane_b32 s3, v2       ; w
    v_lshrrev_b32 v3, 5, v1          ; h
    v_and_b32 v2, 31, v1
    s_waitcnt lgkmcnt(0)
    """)
    stamp(a, 0)
    a(f"""
    s_mov_b32 s20, s6
    s_and_b32 s21, s7, 0xffff
    s_mov_b32 s22, {WS_END}
    s_mov_b32 s23, 0x20000
    s_cmp_ge_u32 s3, {NAW}
    s_cbranch_scc1 K2_GEMM
    s_lshl_b32 s35, s35, 3
    s_mul_i32 s36, s3, {NU}
    s_add_u32 s35, s35, s36          ; qtile (u=0)
    s_mov_b32 s40, 0x000fffff
    s_mov_b32 s41, 0x000fffff
    s_mov_b32 s42, 0
    s_mov_b32 s43, -1
    s_mov_b32 s44, -1
    s_mov_b32 s45, 0
    s_mov_b32 s46, 0
    s_mul_i32 s36, s34, 81920
    s_mul_i32 s37, s35, 1280
    s_add_u32 s36, s36, s37
    s_add_u32 s36, s36, {WS_QF}
    s_mul_i32 s37, s34, 163840
    s_add_u32 s37, s37, {WS_KV}
    v_lshlrev_b32 v{vKa}, 4, v1                 ; lane*16
    v_lshlrev_b32 v{vKHa}, 3, v2
    v_add_u32 v{vKHa}, 1024, v{vKHa}            ; 1024 + (l%32)*8
    v_mul_u32_u24 v{vVa}, 20, v3
    v_add_u32 v{vVa}, v{vVa}, v2
    v_lshlrev_b32 v{vVa}, 4, v{vVa}
    v_add_u32 v{vVa}, 1280, v{vVa}              ; 1280 + (h*20+d)*16
    s_mul_i32 s38, s3, {1024*DPR}
    v_add_u32 v{vDma}, s38, v{vKa}
    """)
    for u in range(NU):
        a(f"v_mov_b32 v{QH[u]}, 0")
        a(f"v_mov_b32 v{QH[u]+1}, 0")
    for u in range(NU):
        a(f"buffer_load_dwordx4 v[{Q[u]}:{Q[u]+3}], v{vKa}, s[20:23], s36 offen offset:{1280*u}")
    a("s_mov_b64 exec, s[44:45]")
    for u in range(NU):
        a(f"buffer_load_dwordx2 v[{QH[u]}:{QH[u]+1}], v{vKHa}, s[20:23], s36 offen offset:{1280*u}")
    a(f"""
    s_mov_b64 exec, -1
    v_mov_b32 v{T}, {K2_FLAG}
    v_mov_b32 v{T+1}, 0
    ds_write_b32 v{T}, v{T+1}
    ds_write_b32 v{T}, v{T+1} offset:4
    v_mov_b32 v{T+2}, 0
    v_mov_b32 v{T+3}, 0x3f803f80
    v_cmp_eq_u32 vcc, 20, v2
    v_cmp_eq_u32 s[48:49], 24, v2
    s_or_b64 vcc, vcc, s[48:49]
    s_nop 1
    v_cndmask_b32 v{T+2}, v{T+2}, v{T+3}, vcc
    """)
    for b in range(2):
        for r in range(8):
            a(f"v_mov_b32 v{V[b]+r}, v{T+2}")
    a.label("K2_RESTART")
    a("s_mov_b32 s39, s37")
    def dma(slot):
        a(f"s_add_u32 m0, s38, {slot*8192}")
        a("s_nop 0")
        for i_ in range(DPR):
            a(f"buffer_load_dwordx4 v{vDma}, s[20:23], s39 offen offset:{1024*i_} lds")
        a("s_add_u32 s39, s39, 8192")
    dma(0); dma(1); dma(2)
    for u in range(NU):
        for r in range(16):
            a(f"v_mov_b32 v{O[u]+r}, 0")
        for r in range(4, 8):
            a(f"v_mov_b32 v{P[u]+r}, 0")
    a(f"s_waitcnt vmcnt({2*DPR}) lgkmcnt(0)")
    a("s_barrier")
    dma(3)
    def readK(tt):
        off = (tt % 16) * 2560
        kl = KLb[tt % 2]; kh = KHb[tt % 2]
        a(f"ds_read_b128 v[{kl}:{kl+3}], v{vKa} offset:{off}")
        a(f"ds_read_b64 v[{kh}:{kh+1}], v{vKHa} offset:{off}")
    def readV(tt):
        off = (tt % 16) * 2560
        b = V[tt % 2]
        a("s_mov_b64 exec, s[40:41]")
        a(f"ds_read_b128 v[{b}:{b+3}], v{vVa} offset:{off}")
        a(f"ds_read_b128 v[{b+4}:{b+7}], v{vVa} offset:{off+640}")
        a("s_mov_b64 exec, -1")
    KL = KLb[0]; KH = KHb[0]
    def qk(u, sb, c):
        a(f"v_mfma_f32_32x32x16_bf16 v[{sb}:{sb+15}], v[{KL}:{KL+3}], v[{Q[u]}:{Q[u]+3}], {c}")
        a(f"v_mfma_f32_32x32x8_bf16 v[{sb}:{sb+15}], v[{KH}:{KH+1}], v[{QH[u]}:{QH[u]+1}], v[{sb}:{sb+15}]")
    def maxtree(sb, dst, first):
        if first:
            a(f"v_max3_f32 v{dst}, v{sb}, v{sb+1}, v{sb+2}")
            a(f"v_max_f32 v{dst}, v{dst}, v{sb+3}")
            rng = range(4, 16, 2)
        else:
            rng = range(0, 16, 2)
        for i in rng:
            a(f"v_max3_f32 v{dst}, v{dst}, v{sb+i}, v{sb+i+1}")
    def crosshalf_to_nc(u, m):
        a(f"""
        v_mov_b32 v{T+2}, v{m}
        v_mov_b32 v{T+3}, v{m}
        s_nop 1
        v_permlane32_swap_b32 v{T+2}, v{T+3}
        s_nop 1
        v_max_f32 v{T+2}, v{T+2}, v{T+3}
        """)
        for r in range(16):
            a(f"v_sub_f32 v{NC[u]+r}, 0, v{T+2}")
    readK(0)
    a("s_waitcnt lgkmcnt(0)")
    a(f"""
    s_cmp_lg_u32 s46, 0
    s_cbranch_scc1 K2_HAVE_NC
    """)
    for u in range(NU): qk(u, S[u][0], "0")
    a("s_nop 15")
    for u in range(NU):
        maxtree(S[u][0], T+4+u, True)
    for u in range(NU):
        crosshalf_to_nc(u, T+4+u)
    a("s_nop 1")
    a.label("K2_HAVE_NC")
    for u in range(NU):
        qk(u, S[u][0], f"v[{NC[u]}:{NC[u]+15}]")
    readK(1)
    readV(0)
    a("s_mov_b32 s47, 0")
    stamp(a, 1)
    a.label("K2_LOOP")
    sync_at = {1:4, 4:0, 7:1, 10:2, 14:3}
    for tt in range(16):
        vb = V[tt % 2]; vp = V[(tt+1) % 2]
        kl = KLb[(tt+1) % 2]; kh = KHb[(tt+1) % 2]
        for u in range(NU):
            sc = S[u][tt % 2]; sn = S[u][(tt+1) % 2]; Pu = P[u]; Ou = O[u]
            def e(i): a(f"v_exp_f32 v{sc+i}, v{sc+i}")
            def c(j): a(f"v_cvt_pk_bf16_f32 v{Pu+j}, v{sc+2*j}, v{sc+2*j+1}")
            if u == 0: a("s_waitcnt lgkmcnt(2)")
            a(f"v_mfma_f32_32x32x16_bf16 v[{sn}:{sn+15}], v[{kl}:{kl+3}], v[{Q[u]}:{Q[u]+3}], v[{NC[u]}:{NC[u]+15}]")
            e(0); e(1); e(2); c(0); e(3)
            a(f"v_mfma_f32_32x32x16_bf16 v[{Ou}:{Ou+15}], v[{vp+4}:{vp+7}], v[{Pu+4}:{Pu+7}], v[{Ou}:{Ou+15}]")
            if u == NU-1:
                if tt in sync_at:
                    a(f"s_waitcnt vmcnt({2*DPR}) lgkmcnt(0)")
                    a("s_barrier")
                    dma(sync_at[tt])
                readK(tt+2)
                readV(tt+1)
            e(4); c(1); e(5); e(6); c(2); e(7)
            a(f"v_mfma_f32_32x32x8_bf16 v[{sn}:{sn+15}], v[{kh}:{kh+1}], v[{QH[u]}:{QH[u]+1}], v[{sn}:{sn+15}]")
            e(8); c(3); e(9); e(10); c(4); e(11)
            if u == 0: a(f"s_waitcnt lgkmcnt({0 if NU == 2 else 4})")
            a(f"v_mfma_f32_32x32x16_bf16 v[{Ou}:{Ou+15}], v[{vb}:{vb+3}], v[{Pu}:{Pu+3}], v[{Ou}:{Ou+15}]")
            e(12); e(13); c(5); e(14); e(15); c(6); c(7)
    a(f"""
    s_add_u32 s47, s47, 1
    s_cmp_lt_u32 s47, 4
    s_cbranch_scc1 K2_LOOP
    """)
    for u in range(NU):
        a(f"v_mfma_f32_32x32x16_bf16 v[{O[u]}:{O[u]+15}], v[{V[1]+4}:{V[1]+7}], v[{P[u]+4}:{P[u]+7}], v[{O[u]}:{O[u]+15}]")
    stamp(a, 2)
    a(f"""
    s_nop 15
    v_cndmask_b32 v{T+4}, v{O[0]+12}, v{O[0]+8}, s[42:43]     ; l (u=0)
    v_cndmask_b32 v{T+5}, v{O[NU-1]+12}, v{O[NU-1]+8}, s[42:43]     ; l (u=1)
    s_cmp_eq_u32 s46, 0
    s_cbranch_scc1 K2_CHECK
    s_waitcnt vmcnt(0) lgkmcnt(0)
    s_barrier
    s_branch K2_FINISH
    K2_CHECK:
    v_mov_b32 v{T+6}, 0x5d800000
    v_cmp_nlt_f32 vcc, v{T+4}, v{T+6}
    v_cmp_nlt_f32 s[48:49], v{T+5}, v{T+6}
    v_mov_b32 v{T}, {K2_FLAG}
    v_mov_b32 v{T+1}, 1
    s_or_b64 vcc, vcc, s[48:49]
    s_and_saveexec_b64 s[48:49], vcc
    s_cbranch_execz K2_NOBAD
    ds_write_b32 v{T}, v{T+1}
    K2_NOBAD:
    s_mov_b64 exec, -1
    s_waitcnt vmcnt(0) lgkmcnt(0)
    s_barrier
    ds_read_b32 v{T+1}, v{T}
    s_waitcnt lgkmcnt(0)
    v_readfirstlane_b32 s48, v{T+1}
    s_cmp_eq_u32 s48, 0
    s_cbranch_scc1 K2_FINISH
    s_mov_b32 s46, 1
    s_mov_b32 s39, s37
    s_mov_b32 s47, 0
    v_mov_b32 v{T+4}, 0xff800000
    v_mov_b32 v{T+5}, 0xff800000
    K2_MAXLOOP:
    buffer_load_dwordx4 v[{KL}:{KL+3}], v{vKa}, s[20:23], s39 offen
    buffer_load_dwordx2 v[{KH}:{KH+1}], v{vKHa}, s[20:23], s39 offen
    s_waitcnt vmcnt(0)
    """)
    for u in range(NU): qk(u, S[u][0], "0")
    a("s_nop 15")
    for u in range(NU):
        maxtree(S[u][0], T+4+u, False)
    a(f"""
    s_add_u32 s39, s39, 2560
    s_add_u32 s47, s47, 1
    s_cmp_lt_u32 s47, 64
    s_cbranch_scc1 K2_MAXLOOP
    """)
    for u in range(NU):
        crosshalf_to_nc(u, T+4+u)
    a("s_barrier")
    a("s_branch K2_RESTART")
    a.label("K2_FINISH")
    assert NU == 1
    a(f"""
    v_rcp_f32 v{T+4}, v{T+4}
    s_mul_i32 s48, s35, {SN*1024}
    s_mul_i32 s49, s34, 1536
    s_add_u32 s48, s48, s49
    s_add_u32 s48, s48, {WS_AF}
    """)
    Ou = O[0]; Pu = P[0]
    for r in range(12):
        a(f"v_mul_f32 v{Ou+r}, v{Ou+r}, v{T+4}")
    for g in range(3):
        a(f"v_cvt_pk_bf16_f32 v{Pu+2*g}, v{Ou+4*g}, v{Ou+4*g+1}")
        a(f"v_cvt_pk_bf16_f32 v{Pu+2*g+1}, v{Ou+4*g+2}, v{Ou+4*g+3}")
    a(f"""
    v_mov_b32 v{Pu+6}, 0
    v_mov_b32 v{Pu+7}, 0
    v_permlane32_swap_b32 v{Pu}, v{Pu+2}
    v_permlane32_swap_b32 v{Pu+1}, v{Pu+3}
    buffer_store_dwordx4 v[{Pu}:{Pu+3}], v{vKa}, s[20:23], s48 offen sc1
    s_mov_b64 exec, s[44:45]
    buffer_store_dwordx4 v[{Pu+4}:{Pu+7}], v{vKa}, s[20:23], s48 offen offset:1024 sc1
    """)
    a(f"""
    s_mov_b64 exec, 1
    v_mov_b32 v{T}, {K2_FLAG+4}
    v_mov_b32 v{T+1}, 1
    s_waitcnt vmcnt(0)
    ds_add_rtn_u32 v{T+2}, v{T}, v{T+1}
    s_waitcnt lgkmcnt(0)
    v_readfirstlane_b32 s48, v{T+2}
    s_cmp_lg_u32 s48, {NAW-1}
    s_cbranch_scc1 K2_NOTLAST
    v_mov_b32 v{T}, s54
    global_atomic_add v{T}, v{T+1}, s[6:7] sc1
    K2_NOTLAST:
    s_mov_b64 exec, -1
    """)
    if STAMP:
        a("s_waitcnt vmcnt(0)")
        stamp(a, 3); stamp_end(a, 2, 4)
    a("s_endpgm")
    a.label("K2_GEMM")
    NS = 24; DEPTH = 3
    pat = [1,1,1,2]*4 + [1,2,1]
    assert sum(pat) == 24 and len(pat) == 19
    BAR_AFTER = set()
    acc_ = 0
    for p_ in pat:
        acc_ += p_; BAR_AFTER.add(acc_-1)
    ACC = 16; FB = 96
    a(f"""
    s_sub_u32 s36, s3, {NAW}             ; g
    s_lshl_b32 s35, s35, 3
    s_lshr_b32 s39, s34, 2
    s_add_u32 s39, s39, s35
    s_and_b32 s35, s34, 3            ; ng
    s_mov_b32 s34, s39
    v_lshlrev_b32 v4, 4, v1          ; lane*16
    v_add_u32 v5, 4096, v4
    s_mul_i32 s39, s36, {NS}
    s_add_u32 s39, s39, {SO}         ; first s
    s_mul_i32 s37, s34, {SN*1024}
    s_add_u32 s37, s37, {WS_AF}
    s_mul_i32 s38, s36, {12*1024}
    s_add_u32 s55, s37, s38
    s_lshl_b32 s38, s39, 10
    s_add_u32 s37, s37, s38          ; A soffset
    s_mul_i32 s38, s39, 20
    s_mul_i32 s39, s35, 5
    s_add_u32 s38, s38, s39
    s_lshl_b32 s38, s38, 10
    s_add_u32 s38, s38, {WS_WF}      ; B soffset
    s_mul_i32 s56, s36, 240
    s_add_u32 s56, s56, s39
    s_lshl_b32 s56, s56, 10
    s_add_u32 s56, s56, {WS_WF}
    """)
    def loadB(F, sreg):
        for j in range(4):
            a(f"buffer_load_dwordx4 v[{F+4+4*j}:{F+7+4*j}], v4, s[20:23], {sreg} offen offset:{1024*j}")
        a(f"buffer_load_dwordx4 v[{F+20}:{F+23}], v5, s[20:23], {sreg} offen")
        a(f"s_add_u32 {sreg}, {sreg}, 20480")
    def loads(i):
        F = FB + (i % DEPTH)*24
        a(f"buffer_load_dwordx4 v[{F}:{F+3}], v4, s[20:23], s37 offen")
        loadB(F, "s38")
        a("s_add_u32 s37, s37, 1024")
    def mm(F, A=None):
        A = F if A is None else A
        for j in range(5):
            c = ACC + 16*j
            a(f"v_mfma_f32_32x32x16_bf16 v[{c}:{c+15}], v[{F+4+4*j}:{F+7+4*j}], v[{A}:{A+3}], v[{c}:{c+15}]")
    for i in range(DEPTH-1): loads(i)
    for r in range(80): a(f"v_mov_b32 v{ACC+r}, 0")
    a("s_barrier")
    for i in range(NS):
        if i + DEPTH - 1 < NS:
            loads(i + DEPTH - 1)
        rem = min(DEPTH-1, NS-1-i)
        a(f"s_waitcnt vmcnt({6*rem})")
        mm(FB + (i % DEPTH)*24)
        if i in BAR_AFTER: a("s_barrier")
    NL = 4
    a(f"""
    s_mul_i32 s40, s36, 20480
    s_add_u32 s40, s40, {K2_RED}
    v_add_u32 v8, s40, v4
    """)
    for st in range(NL):
        a(f"s_add_u32 m0, s40, {st*5120}")
        a("s_nop 0")
        for j in range(4):
            a(f"buffer_load_dwordx4 v4, s[20:23], s56 offen offset:{1024*j} lds")
        a(f"s_add_u32 m0, s40, {st*5120+4096}")
        a("s_nop 0")
        a(f"buffer_load_dwordx4 v5, s[20:23], s56 offen lds")
        a("s_add_u32 s56, s56, 20480")
    loadB(FB, "s56")
    loadB(FB+24, "s56")
    XB = FB + 52
    a(f"""
    s_mov_b32 s12, s8
    s_and_b32 s13, s9, 0xffff
    s_mov_b32 s14, {2048*1280}
    s_mov_b32 s15, 0x20000
    s_mov_b32 s16, s10
    s_and_b32 s17, s11, 0xffff
    s_mov_b32 s18, 1280
    s_mov_b32 s19, 0x20000
    s_mov_b32 s24, s4
    s_and_b32 s25, s5, 0xffff
    s_mov_b32 s26, {2048*1280}
    s_mov_b32 s27, 0x20000
    s_mul_i32 s39, s35, 320
    s_mul_i32 s41, s36, 80           ; 5g*8*2 bytes
    s_add_u32 s39, s39, s41
    v_lshlrev_b32 v6, 3, v3          ; 4h*2
    v_add_u32 v6, s39, v6            ; b2 voff
    s_lshl_b32 s41, s34, 5
    v_add_u32 v7, s41, v2            ; token
    s_movk_i32 s41, 1280
    v_mul_lo_u32 v7, v7, s41
    v_add_u32 v7, v7, v6
    """)
    for e in range(5):
        a(f"buffer_load_dwordx2 v[{XB+4*e}:{XB+4*e+1}], v7, s[12:15], 0 offen offset:{16*e}")
        a(f"buffer_load_dwordx2 v[{XB+4*e+2}:{XB+4*e+3}], v6, s[16:19], 0 offen offset:{16*e}")
    a(f"""
    v_mov_b32 v9, {K2_FLAG}
    s_barrier                        ; B20
    s_barrier
    ds_read_b32 v10, v9
    s_waitcnt lgkmcnt(0)
    v_readfirstlane_b32 s41, v10
    s_cmp_eq_u32 s41, 0
    s_cbranch_scc1 K2_G_NOFB
    s_mov_b32 s41, 0
    K2_G_FB:
    s_barrier
    s_add_u32 s41, s41, 1
    s_cmp_lt_u32 s41, 23
    s_cbranch_scc1 K2_G_FB
    K2_G_NOFB:
    s_mul_i32 s43, s36, 10240
    v_add_u32 v11, s43, v4
    """)
    for st in range(2):
        a(f"s_add_u32 m0, s43, {st*5120}")
        a("s_nop 0")
        for j in range(4):
            a(f"buffer_load_dwordx4 v4, s[20:23], s56 offen offset:{1024*j} lds")
        a(f"s_add_u32 m0, s43, {st*5120+4096}")
        a("s_nop 0")
        a(f"buffer_load_dwordx4 v5, s[20:23], s56 offen lds")
        a("s_add_u32 s56, s56, 20480")
    a(f"""
    s_cmp_lg_u32 s36, 0
    s_cbranch_scc1 K2_G_GO
    v_mov_b32 v9, s54
    s_mov_b32 s41, 0
    K2_G_SPIN:
    s_sleep 6
    global_load_dword v10, v9, s[6:7] sc1
    s_waitcnt vmcnt(0)
    v_readfirstlane_b32 s42, v10
    s_cmp_ge_u32 s42, 32
    s_cbranch_scc1 K2_G_GO
    s_add_u32 s41, s41, 1
    s_cmp_lt_u32 s41, 0x100000
    s_cbranch_scc1 K2_G_SPIN
    K2_G_GO:
    s_waitcnt vmcnt(0)
    s_barrier
    """)
    stamp(a, 1)
    AS = [FB, FB+24, FB+48, 12]
    order = [4, 5, 0, 1, 8, 2, 9, 3, 10, 6, 11, 7]
    def loadA(k):
        st = order[k]
        r = AS[k % 4]
        off = st*1024
        if off < 4096: a(f"buffer_load_dwordx4 v[{r}:{r+3}], v4, s[20:23], s55 offen offset:{off} sc1")
        elif off < 8192: a(f"buffer_load_dwordx4 v[{r}:{r+3}], v5, s[20:23], s55 offen offset:{off-4096} sc1")
        else: a(f"buffer_load_dwordx4 v[{r}:{r+3}], v5, s[20:23], s57 offen offset:{off-8192} sc1")
    a("s_add_u32 s57, s55, 4096")
    def ldsB(st, F):
        for j in range(5):
            if st < NL: a(f"ds_read_b128 v[{F+4+4*j}:{F+7+4*j}], v8 offset:{st*5120+1024*j}")
            else:       a(f"ds_read_b128 v[{F+4+4*j}:{F+7+4*j}], v11 offset:{(st-6)*5120+1024*j}")
    b0, b1 = FB, FB+24
    out = []
    def issueA(k):
        loadA(k); out.append(("A", k))
    def issueB(F, st):
        loadB(F, "s56"); out.extend([("B", st)]*5)
    def wait_for(tags, lgkm=False):
        last = max([i_ for i_, t in enumerate(out) if t in tags], default=-1)
        n = len(out) - 1 - last
        w = []
        if last >= 0: w.append(f"vmcnt({n})")
        if lgkm: w.append("lgkmcnt(0)")
        if w: a("s_waitcnt " + " ".join(w))
        del out[:last+1]
    for k in range(4): issueA(k)
    bufB = {4: b0, 5: b1, 0: b1, 1: b1, 8: b0, 2: b1, 9: b0, 3: b1, 10: b0, 6: b1, 11: b0, 7: b1}
    refill = {4: ("g", 8), 5: ("l", 0), 0: ("l", 1), 1: ("l", 2), 8: ("g", 9), 2: ("l", 3), 9: ("g", 10), 3: ("l", 6), 10: ("g", 11), 6: ("l", 7)}
    LDS_STEPS = {0, 1, 2, 3, 6, 7}
    for k, st in enumerate(order):
        wait_for({("A", k), ("B", st)}, lgkm=(st in LDS_STEPS))
        mm(bufB[st], AS[k % 4])
        if k + 4 < len(order): issueA(k + 4)
        if st in refill:
            kind, nst = refill[st]
            assert bufB[nst] == bufB[st]
            if kind == "g": issueB(bufB[st], nst)
            else: ldsB(nst, bufB[st])
    stamp(a, 2)
    a("s_nop 15")
    for idx in range(20):
        c = ACC + 4*idx
        a(f"ds_write_b128 v8, v[{c}:{c+3}] offset:{1024*idx}")
    a(f"""
    s_mul_i32 s40, s36, 5120
    s_add_u32 s40, s40, {K2_RED}
    v_add_u32 v9, s40, v4
    v_add_u32 v10, 0xA000, v9
    s_waitcnt lgkmcnt(0)
    s_barrier
    """)
    RB = ACC
    for e in range(5):
        for ww in range(4):
            base = 9 if ww < 2 else 10
            a(f"ds_read_b128 v[{RB+16*e+4*ww}:{RB+16*e+4*ww+3}], v{base} offset:{(ww%2)*20480 + 1024*e}")
    for e in range(5):
        r = RB + 16*e
        xb = XB + 4*e
        TT = FB
        for d in range(2):
            a(f"v_lshlrev_b32 v{TT+2*d}, 16, v{xb+d}")
            a(f"v_and_b32 v{TT+1+2*d}, 0xffff0000, v{xb+d}")
            a(f"v_lshlrev_b32 v{TT+4+2*d}, 16, v{xb+2+d}")
            a(f"v_and_b32 v{TT+5+2*d}, 0xffff0000, v{xb+2+d}")
        for j in range(4):
            a(f"v_add_f32 v{TT+j}, v{TT+j}, v{TT+4+j}")
        a(f"s_waitcnt lgkmcnt({min(15,4*(4-e))})")
        for j in range(4):
            a(f"v_add_f32 v{r+j}, v{r+j}, v{r+4+j}")
            a(f"v_add_f32 v{r+8+j}, v{r+8+j}, v{r+12+j}")
        for j in range(4):
            a(f"v_add_f32 v{r+j}, v{r+j}, v{r+8+j}")
        for j in range(4):
            a(f"v_add_f32 v{r+j}, v{r+j}, v{TT+j}")
        a(f"v_cvt_pk_bf16_f32 v{r+12}, v{r}, v{r+1}")
        a(f"v_cvt_pk_bf16_f32 v{r+13}, v{r+2}, v{r+3}")
        a(f"buffer_store_dwordx2 v[{r+12}:{r+13}], v7, s[24:27], 0 offen offset:{16*e}")
    if STAMP:
        a("s_waitcnt vmcnt(0)")
        stamp(a, 3); stamp_end(a, 3, 4)
    a.label("K2_END")
    a("s_endpgm")
    return a.text(), kernel_desc(name, NVG, 102 if STAMP else 64), f"; @launch kernel={name} grid=(256,1,1) block=({(NAW+4)*64},1,1) lds={K2_LDS}"
```

```python
from asmlib import *
import math

LOG2E = 1.4426950408889634
QSCALE = (20 ** -0.5) * LOG2E
GC0 = -2.0 * math.sqrt(2.0/math.pi) * LOG2E
GC1 = GC0 * 0.044715

NKS = 10
NARRIVE = 40
LDS_B = 98304
LDS_ST = 98304 + 3*16384
LDS_CSP = LDS_ST + 4096
LDS_CS = LDS_CSP + 2048
K1_LDS = LDS_CS + 2048

def gen_side(a):
    a.label("K1_SIDE")
    a(f"""
    s_cmp_lg_u32 s2, 0
    s_cbranch_scc1 K1_SIDE_NZ
    v_lshlrev_b32 v5, 4, v0
    v_mov_b32 v8, 0
    v_mov_b32 v9, 0
    v_mov_b32 v10, 0
    v_mov_b32 v11, 0
    s_mov_b32 s37, {WS_CNT}
    buffer_store_dwordx4 v[8:11], v5, s[20:23], s37 offen
    K1_SIDE_NZ:
    s_lshl_b32 s35, s2, 3
    s_add_u32 s35, s35, s3
    s_mov_b32 s12, s50
    s_and_b32 s13, s51, 0xffff
    s_mov_b32 s14, {2048*1280}
    s_mov_b32 s15, 0x20000
    s_lshl_b32 s36, s35, 1
    v_lshrrev_b32 v3, 5, v1
    v_add_u32 v3, s36, v3
    v_and_b32 v4, 31, v1
    s_movk_i32 s36, 1280
    v_mul_lo_u32 v5, v3, s36
    v_lshl_add_u32 v5, v4, 3, v5     ; voff
    v_lshlrev_b32 v3, 2, v3
    """)
    L = 64; NIT = 4; T = 40
    for it in range(NIT):
        a(f"s_mov_b32 s37, {640*1280*it}")
        for j in range(5):
            a(f"buffer_load_dwordx2 v[{L+10*it+2*j}:{L+10*it+2*j+1}], v5, s[12:15], s37 offen offset:{256*j}")
    def rne(r):
        a(f"v_cvt_pk_bf16_f32 v{r}, v{r}, v{r}")
        a(f"v_lshlrev_b32 v{r}, 16, v{r}")
    a("v_mov_b32 v6, 0x3f803f80")
    for it in range(NIT):
        a(f"v_mov_b32 v{20+it}, 0")
        a(f"v_mov_b32 v{26+it}, 0")
    for it in range(NIT):
        a(f"s_waitcnt vmcnt({5*(NIT-1-it)})")
        for j_ in range(10):
            a(f"v_dot2_f32_bf16 v{20+it}, v{L+10*it+j_}, v6, v{20+it}")
            a(f"v_dot2_f32_bf16 v{26+it}, v{L+10*it+j_}, v{L+10*it+j_}, v{26+it}")
    regs = [20+it for it in range(NIT)] + [26+it for it in range(NIT)]
    a("s_nop 3")
    for sh in (8,4,2,1):
        for r in regs:
            a(f"v_add_f32_dpp v{r}, v{r}, v{r} row_ror:{sh} row_mask:0xf bank_mask:0xf")
    for k_, r in enumerate(regs):
        a(f"ds_swizzle_b32 v{32+k_}, v{r} offset:0x401F")
    a("s_waitcnt lgkmcnt(0)")
    for k_, r in enumerate(regs):
        a(f"v_add_f32 v{r}, v{r}, v{32+k_}")
    S = T; M = T+1; A0 = T+2; A1 = T+3; R = T+4; D0 = T+5; D1 = T+6; MB = T+7; VV = T+8
    a(f"v_mov_b32 v{S}, v20")
    a(f"v_mov_b32 v{A0}, v26")
    for it in range(1, NIT):
        a(f"v_cmp_eq_u32 vcc, {it}, v4")
        a("s_nop 1")
        a(f"v_cndmask_b32 v{S}, v{S}, v{20+it}, vcc")
        a(f"v_cndmask_b32 v{A0}, v{A0}, v{26+it}, vcc")
    a(f"v_mul_f32 v{M}, 0x{f32bits(1.0/640):08x}, v{S}")
    a(f"v_mul_f32 v{A0}, 0x{f32bits(1.0/640):08x}, v{A0}")
    a(f"v_fma_f32 v{VV}, -v{M}, v{M}, v{A0}")
    a(f"v_max_f32 v{VV}, 0, v{VV}")
    a(f"v_mov_b32 v{MB}, v{M}"); rne(MB)
    a(f"v_mov_b32 v{A0}, v{VV}"); rne(A0)
    a(f"v_add_f32 v{A0}, 0x{f32bits(1e-5):08x}, v{A0}"); rne(A0)
    a(f"v_sqrt_f32 v{A0}, v{A0}"); a("s_nop 0"); rne(A0)
    a(f"v_rcp_f32 v{R}, v{A0}"); a("s_nop 0")
    a(f"v_sub_f32 v{D0}, v{M}, v{MB}")
    a(f"v_mul_f32 v{D0}, v{D0}, v{R}"); rne(D0)
    a(f"v_mul_f32 v{D1}, v{VV}, v{R}")
    a(f"v_mul_f32 v{D1}, v{D1}, v{R}"); rne(D1)
    a(f"v_add_f32 v{D1}, 0x{f32bits(1e-5):08x}, v{D1}"); rne(D1)
    a(f"v_sqrt_f32 v{D1}, v{D1}"); a("s_nop 0"); rne(D1)
    a(f"v_rcp_f32 v{D1}, v{D1}"); a("s_nop 0")
    O = 50
    a(f"v_mov_b32 v{O}, v{R}")
    a(f"v_mul_f32 v{O+1}, v{R}, v{MB}")
    a(f"v_mul_f32 v{O+2}, v{R}, v{D1}")
    a(f"v_add_f32 v{O+3}, v{O+1}, v{D0}")
    a(f"v_mul_f32 v{O+3}, v{O+3}, v{D1}")
    a(f"v_sub_f32 v{O+1}, 0, v{O+1}")
    a(f"v_sub_f32 v{O+3}, 0, v{O+3}")
    a(f"v_mul_u32_u24 v7, {640*4}, v4")
    a(f"v_add_u32 v7, v7, v3")
    a(f"v_cmp_gt_u32 s[40:41], {NIT}, v4")
    a(f"v_cmp_gt_u32 vcc, {2048*4}, v7")
    a("s_and_b64 s[40:41], s[40:41], vcc")
    a("s_mov_b64 exec, s[40:41]")
    for q in range(4):
        a(f"s_mov_b32 s37, {WS_ST + 8192*q}")
        a(f"buffer_store_dword v{O+q}, v7, s[20:23], s37 offen sc1")
    a("s_mov_b64 exec, -1")
    stamp(a, 2)
    a(f"""
    s_waitcnt vmcnt(0)
    s_barrier
    s_cmp_lg_u32 s3, 0
    s_cbranch_scc1 K1_SIDE_RELAYOUT
    s_mov_b64 exec, 1
    v_mov_b32 v6, 0
    v_mov_b32 v7, 1
    global_atomic_add v6, v7, s[52:53] sc1
    s_mov_b64 exec, -1
    K1_SIDE_RELAYOUT:
    """)
    stamp(a, 3)
    a(f"""
    v_lshrrev_b32 v8, 5, v1          ; h
    v_and_b32 v4, 31, v1             ; n
    v_lshlrev_b32 v5, 4, v1
    v_add_u32 v6, 4096, v5
    s_movk_i32 s33, 1280
    K1_RL_LOOP:
    s_lshr_b32 s36, s35, 2           ; s
    s_and_b32 s37, s35, 3
    s_mul_i32 s37, s37, 5            ; t0
    s_cmp_lt_u32 s36, {SO}
    s_cselect_b32 s12, s54, s56
    s_cselect_b32 s13, s55, s57
    s_cselect_b32 s14, {640*1280}, {1536*1280}
    s_and_b32 s13, s13, 0xffff
    s_mov_b32 s15, 0x20000
    s_lshl_b32 s38, s36, 1
    v_add_u32 v3, s38, v8            ; G = 2s + h
    s_cmp_lt_u32 s36, {SO}
    s_cbranch_scc1 K1_RL_WO
    v_subrev_u32 v3, {2*SO}, v3
    v_lshlrev_b32 v3, 3, v3
    v_mov_b32 v7, 0
    s_branch K1_RL_GO
    K1_RL_WO:
    ; wo part: head = G/3, part = G%3, row0 = 20*head + 8*part ; rows j>=4 invalid when part==2
    v_mul_u32_u24 v7, 0x5556, v3
    v_lshrrev_b32 v7, 16, v7         ; head
    v_mul_u32_u24 v9, 3, v7
    v_sub_u32 v9, v3, v9             ; part
    v_mul_u32_u24 v3, 20, v7
    v_lshl_add_u32 v3, v9, 3, v3
    v_cmp_eq_u32 vcc, 2, v9
    v_mov_b32 v7, 0
    v_mov_b32 v9, 0x40000000
    v_cndmask_b32 v7, v7, v9, vcc
    K1_RL_GO:
    v_mul_lo_u32 v3, v3, s33
    v_lshl_add_u32 v3, v4, 1, v3     ; row0*1280 + n*2
    v_add_u32 v7, v7, v3
    s_lshl_b32 s38, s37, 6
    """)
    for j in range(8):
        a(f"s_add_u32 s{24+j}, s38, {1280*j}")
    for tt in range(5):
        for j in range(8):
            a(f"buffer_load_ushort v{10+8*tt+j}, v{3 if j < 4 else 7}, s[12:15], s{24+j} offen offset:{64*tt}")
    a(f"""
    s_mul_i32 s38, s36, 20
    s_add_u32 s38, s38, s37
    s_lshl_b32 s38, s38, 10
    s_add_u32 s38, s38, {WS_WF}
    """)
    for tt in range(5):
        a(f"s_waitcnt vmcnt({8*(4-tt)+tt})")
        for d in range(4):
            a(f"v_lshl_or_b32 v{52+4*(tt%3)+d}, v{10+8*tt+2*d+1}, 16, v{10+8*tt+2*d}")
        r = 52+4*(tt%3)
        a(f"buffer_store_dwordx4 v[{r}:{r+3}], v5, s[20:23], s38 offen offset:{1024*tt}" if tt < 4 else
          f"buffer_store_dwordx4 v[{r}:{r+3}], v6, s[20:23], s38 offen")
    a(f"""
    s_waitcnt vmcnt(0)
    s_add_u32 s35, s35, 320
    s_cmp_lt_u32 s35, {SN*4}
    s_cbranch_scc1 K1_RL_LOOP
    """)
    stamp(a, 1); stamp_end(a, 0, 4)
    a("s_endpgm")

def gen_k1():
    a = Asm()
    name = "k1_gemm_kernel"
    a.lines.append(kernel_header(name))
    vDA = [4,5,6,7]; vDB = [8,9]
    vA = [[10,11,12,13], [200,201,202,203]]
    vA2 = [[14,15,16,17], [204,205,206,207]]
    vB = [18,19]
    FR = [20, 36]
    ACC = 64
    ST = 128
    RS = 208
    def acc(mi, ni): return ACC + (mi*2+ni)*16
    a(f"""
    s_cmp_ge_u32 s2, 256
    s_cbranch_scc1 K1_END
    s_load_dwordx2 s[4:5], s[0:1], {KA_WQKV}
    s_load_dwordx2 s[6:7], s[0:1], {KA_WS}
    s_load_dwordx2 s[8:9], s[0:1], {KA_W1}
    s_load_dwordx2 s[10:11], s[0:1], {KA_B1}
    s_load_dwordx2 s[50:51], s[0:1], {KA_X}
    s_load_dwordx2 s[52:53], s[0:1], {KA_DBG}
    s_load_dwordx2 s[54:55], s[0:1], {KA_WO}
    s_load_dwordx2 s[56:57], s[0:1], {KA_W2}
    v_lshrrev_b32 v2, 6, v0
    v_and_b32 v1, 63, v0
    ; tile index T = (wg%8)*27 + (wg-40)/8 ; mh = T/108 ; rem = T%108 ; nt = rem/4 ; mt = mh*4 + rem%4
    s_and_b32 s38, s2, 7
    s_mul_i32 s38, s38, 27
    s_lshr_b32 s39, s2, 3
    s_sub_u32 s39, s39, 5
    s_add_u32 s38, s38, s39
    s_cmp_ge_u32 s38, 108
    s_cselect_b32 s39, 108, 0
    s_cselect_b32 s34, 4, 0
    s_sub_u32 s38, s38, s39
    s_lshr_b32 s35, s38, 2           ; nt
    s_and_b32 s38, s38, 3
    s_add_u32 s34, s34, s38          ; mt
    v_readfirstlane_b32 s3, v2
    s_and_b32 s36, s3, 3             ; wm
    s_lshr_b32 s37, s3, 2            ; wn
    s_waitcnt lgkmcnt(0)
    """)
    stamp(a, 0)
    a(f"""
    s_mov_b32 s20, s6
    s_and_b32 s21, s7, 0xffff
    s_mov_b32 s22, {WS_END}
    s_mov_b32 s23, 0x20000
    s_cmp_lt_u32 s2, 40
    s_cbranch_scc1 K1_SIDE
    s_mul_i32 s39, s34, {256*1280}
    s_add_u32 s12, s50, s39
    s_addc_u32 s13, s51, 0
    s_and_b32 s13, s13, 0xffff
    s_mov_b32 s14, {256*1280}
    s_mov_b32 s15, 0x20000
    s_cmp_lt_u32 s35, 24
    s_cselect_b32 s64, s37, 0
    s_sub_u32 s39, s35, 24
    s_lshl_b32 s39, s39, 1
    s_add_u32 s39, s39, 24
    s_add_u32 s39, s39, s37
    s_cmp_lt_u32 s35, 24
    s_cselect_b32 s65, s35, s39
    ; SRD_B s[16:19]
    s_cmp_eq_u32 s64, 0
    s_cselect_b32 s16, s4, s8
    s_cselect_b32 s17, s5, s9
    s_cselect_b32 s28, 3840, 3072
    s_cselect_b32 s18, {640*3840}, {640*3072}
    s_cselect_b32 s66, 0, 1920
    s_lshl_b32 s39, s65, 7
    s_add_u32 s16, s16, s39
    s_addc_u32 s17, s17, 0
    s_and_b32 s17, s17, 0xffff
    s_sub_u32 s18, s18, s39
    s_mov_b32 s19, 0x20000
    s_lshl_b32 s39, s65, 6
    s_add_u32 s66, s66, s39
    s_lshl_b32 s31, s28, 6           ; 64*ldb
    s_lshl_b32 s32, s3, 12           ; w*4096
    s_lshl_b32 s33, s3, 11
    s_add_u32 s33, s33, {LDS_B}
    v_lshrrev_b32 v3, 5, v1          ; h
    v_lshrrev_b32 v52, 3, v1         ; l/8
    v_and_b32 v53, 7, v1             ; c'
    v_lshrrev_b32 v54, 4, v1         ; l/16
    s_lshl_b32 s39, s3, 5            ; w*32 rows
    s_movk_i32 s40, 1280
    v_add_u32 v55, s39, v52
    v_mul_lo_u32 v55, v55, s40       ; row*1280 (i=0)
    v_xor_b32 v56, v53, v54          ; c (i even)
    v_xor_b32 v57, 4, v56            ; c (i odd)
    v_lshl_add_u32 v{vDA[0]}, v56, 4, v55
    v_lshl_add_u32 v{vDA[1]}, v57, 4, v55
    v_add_u32 v{vDA[1]}, {8*1280-1024}, v{vDA[1]}
    v_add_u32 v{vDA[2]}, {16*1280-2048}, v{vDA[0]}
    v_add_u32 v{vDA[3]}, {16*1280-2048}, v{vDA[1]}
    v_and_b32 v56, 1, v54            ; (l/16)&1
    v_lshlrev_b32 v56, 2, v56
    v_xor_b32 v56, v53, v56          ; c
    s_lshl_b32 s39, s36, 4           ; (w&3)*16 krows
    v_add_u32 v55, s39, v52          ; + l/8
    v_mul_lo_u32 v55, v55, s28
    v_lshl_add_u32 v{vDB[0]}, v56, 4, v55
    s_lshl_b32 s39, s28, 3
    s_sub_u32 s39, s39, 1024
    v_add_u32 v{vDB[1]}, s39, v{vDB[0]}
    s_mov_b32 s29, 0
    s_mov_b32 s30, 0
    """)
    def dma_piece(ks, piece):
        buf = ks % 3
        if piece < 2:
            a(f"s_add_u32 m0, s32, {buf*32768}")
            a("s_nop 0")
            for i in (2*piece, 2*piece+1):
                a(f"buffer_load_dwordx4 v{vDA[i]}, s[12:15], s29 offen offset:{i*1024} lds")
            if piece == 1: a("s_add_u32 s29, s29, 128")
        else:
            a(f"s_add_u32 m0, s33, {buf*16384}")
            a("s_nop 0")
            for i in range(2):
                a(f"buffer_load_dwordx4 v{vDB[i]}, s[16:19], s30 offen offset:{i*1024} lds")
            a("s_add_u32 s30, s30, s31")
    def dma(ks):
        for p_ in range(3): dma_piece(ks, p_)
    dma(0)
    a("s_barrier")
    dma(1)
    a(f"""
    v_and_b32 v52, 31, v1            ; r
    s_lshl_b32 s39, s36, 6           ; wm*64
    s_lshl_b32 s40, s37, 5
    s_add_u32 s39, s39, s40          ; + wn*32
    v_add_u32 v53, s39, v52
    v_lshlrev_b32 v53, 7, v53
    v_lshrrev_b32 v54, 1, v52
    v_and_b32 v54, 7, v54            ; f
    """)
    for s in range(4):
        a(f"""
        v_add_u32 v55, {2*s}, v3
        v_xor_b32 v55, v55, v54
        v_lshl_add_u32 v{vA[0][s]}, v55, 4, v53
        v_xor_b32 v{vA[1][s]}, 0x1000, v{vA[0][s]}
        v_add_u32 v{vA2[0][s]}, 0x10000, v{vA[0][s]}
        v_add_u32 v{vA2[1][s]}, 0x10000, v{vA[1][s]}
        """)
    a(f"""
    v_lshrrev_b32 v52, 4, v1         ; gq
    v_and_b32 v53, 15, v1            ; i
    v_lshrrev_b32 v54, 2, v53        ; i/4
    v_lshrrev_b32 v55, 1, v52        ; gq/2
    v_lshl_add_u32 v55, v55, 3, v54
    v_lshlrev_b32 v55, 7, v55        ; *128
    v_and_b32 v56, 1, v53
    v_lshl_add_u32 v55, v56, 3, v55  ; + (i%2)*8
    s_lshl_b32 s39, s37, 13          ; wn*8192
    s_add_u32 s39, s39, {LDS_B}
    v_add_u32 v55, s39, v55
    v_and_b32 v56, 1, v52            ; gq%2
    v_lshlrev_b32 v56, 1, v56
    v_bfe_u32 v57, v53, 1, 1         ; (i%4)/2
    v_add_u32 v56, v56, v57
    v_bfe_u32 v54, v53, 3, 1
    v_lshlrev_b32 v54, 2, v54        ; ((i>>3)&1)<<2
    """)
    for ni in range(2):
        a(f"""
        v_add_u32 v57, {ni*4}, v56
        v_xor_b32 v57, v57, v54
        v_lshl_add_u32 v{vB[ni]}, v57, 4, v55
        """)
    for r in range(64):
        a(f"v_mov_b32 v{ACC+r}, 0")
    for r in range(8):
        a(f"v_mov_b32 v{RS+r}, 0")
    a(f"""
    s_lshl_b32 s58, s34, 8
    s_lshl_b32 s39, s36, 6
    s_add_u32 s58, s58, s39
    s_lshl_b32 s39, s37, 5
    s_add_u32 s58, s58, s39
    s_xor_b32 s59, s58, 32
    s_lshl_b32 s58, s58, 2
    s_lshl_b32 s59, s59, 2
    s_cmp_eq_u32 s64, 0
    s_cselect_b32 s39, {WS_ST}, {WS_ST+16384}
    s_add_u32 s58, s58, s39
    s_add_u32 s59, s59, s39
    s_add_u32 s61, s58, 8192
    s_add_u32 s63, s59, 8192
    v_and_b32 v{RS+12}, 31, v1
    v_lshlrev_b32 v{RS+12}, 2, v{RS+12}   ; (l%32)*4
    v_lshlrev_b32 v{RS+13}, 4, v3         ; h*16
    v_mov_b32 v{RS+14}, 0
    s_mov_b32 s62, 0
    s_cmp_lt_u32 s66, 1280
    s_cbranch_scc1 K1_MAIN_N
    s_cmp_ge_u32 s66, 1920
    s_cbranch_scc1 K1_MAIN_N
    """)
    def reads(ks, s, p):
        buf = ks % 3
        offA = buf*32768 if buf < 2 else 0
        F = FR[p]
        for mi in range(2):
            va = vA[mi][s] if buf < 2 else vA2[mi][s]
            a(f"ds_read_b128 v[{F+4*mi}:{F+4*mi+3}], v{va} offset:{offA}")
        for ni in range(2):
            for t in range(2):
                a(f"ds_read_b64_tr_b16 v[{F+8+4*ni+2*t}:{F+9+4*ni+2*t}], v{vB[ni]} offset:{buf*16384+s*2048+t*512}")
    def mfma1(p, vmode, mi, ni):
        F = FR[p]
        A = f"v[{F+4*mi}:{F+4*mi+3}]"; B = f"v[{F+8+4*ni}:{F+8+4*ni+3}]"
        c = acc(mi, ni)
        if vmode: a(f"v_mfma_f32_32x32x16_bf16 v[{c}:{c+15}], {A}, {B}, v[{c}:{c+15}]")
        else:     a(f"v_mfma_f32_32x32x16_bf16 v[{c}:{c+15}], {B}, {A}, v[{c}:{c+15}]")
    import os
    K1EXP = os.environ.get('K1EXP', '')
    def rowstat(p, d):
        if 'norow' in K1EXP: return
        r = FR[p] + d
        a(f"v_lshlrev_b32 v{RS+8}, 16, v{r}")
        a(f"v_and_b32 v{RS+9}, 0xffff0000, v{r}")
        a(f"v_add_f32 v{RS}, v{RS}, v{RS+8}")
        a(f"v_add_f32 v{RS+1}, v{RS+1}, v{RS+9}")
        a(f"v_fmac_f32 v{RS+2}, v{RS+8}, v{RS+8}")
        a(f"v_fmac_f32 v{RS+3}, v{RS+9}, v{RS+9}")
    def colstat(p):
        if 'nocol' in K1EXP: return
        for ni in range(2):
            for d in range(4):
                r = FR[p] + 8 + 4*ni + d
                a(f"v_lshlrev_b32 v{RS+10}, 16, v{r}")
                a(f"v_and_b32 v{RS+11}, 0xffff0000, v{r}")
                a(f"v_add_f32 v{RS+4+2*ni}, v{RS+4+2*ni}, v{RS+10}")
                a(f"v_add_f32 v{RS+5+2*ni}, v{RS+5+2*ni}, v{RS+11}")
    def rne(r):
        a(f"v_cvt_pk_bf16_f32 v{r}, v{r}, v{r}")
        a(f"v_lshlrev_b32 v{r}, 16, v{r}")
    def stat_loads(vmode):
        if vmode:
            for mi in range(2):
                for g in range(4):
                    r = ST + 4 + 8*(mi*4+g)
                    a(f"buffer_load_dwordx4 v[{r}:{r+3}], v{RS+13}, s[20:23], s{58+mi} offen offset:{32*g} sc1")
                    a(f"buffer_load_dwordx4 v[{r+4}:{r+7}], v{RS+13}, s[20:23], s{61+2*mi} offen offset:{32*g} sc1")
        else:
            for mi in range(2):
                a(f"buffer_load_dword v{ST+2*mi}, v{RS+12}, s[20:23], s{58+mi} offen sc1")
                a(f"buffer_load_dword v{ST+2*mi+1}, v{RS+12}, s[20:23], s{61+2*mi} offen sc1")
    def mainloop(vmode):
        tag = "V" if vmode else "N"
        a("s_waitcnt vmcnt(6)")
        a("s_barrier")
        stamp(a, 1)
        reads(0, 0, 0)
        step = 0
        for ks in range(NKS):
            for s in range(4):
                p = step % 2
                if s < 3:
                    reads(ks, s+1, 1-p)
                    a("s_waitcnt lgkmcnt(6)")
                else:
                    if ks + 1 < NKS:
                        a(f"s_waitcnt vmcnt({6 if ks+2 < NKS else 0}) lgkmcnt(0)")
                        a("s_barrier")
                        if ks == 7:
                            a(f"global_load_dword v{RS+15}, v{RS+14}, s[52:53] sc1")
                        if ks == 8:
                            a(f"v_readfirstlane_b32 s39, v{RS+15}")
                            a(f"s_cmp_lt_u32 s39, {NARRIVE}")
                            a(f"s_cbranch_scc1 K1_NOTREADY_{tag}")
                            stat_loads(vmode)
                            a("s_mov_b32 s62, 1")
                            a(f"s_branch K1_READY1_{tag}")
                            a.label(f"K1_NOTREADY_{tag}")
                            a(f"global_load_dword v{RS+15}, v{RS+14}, s[52:53] sc1")
                            a.label(f"K1_READY1_{tag}")
                        reads(ks+1, 0, 1-p)
                    else:
                        a("s_waitcnt lgkmcnt(0)")
                k_ = 0
                for mi in range(2):
                    for ni in range(2):
                        mfma1(p, vmode, mi, ni)
                lb = a.newlabel("K1_CS")
                a(f"s_cmp_lg_u32 s36, {s}")
                a(f"s_cbranch_scc1 {lb}")
                colstat(p)
                a.label(lb)
                if s < 3 and ks + 2 < NKS: dma_piece(ks+2, s)
                if ks == 8 and s == 0 and not vmode:
                    a(f"""
                    s_cmp_eq_u32 s64, 0
                    s_cbranch_scc1 K1_NOBIAS
                    s_mov_b32 s24, s10
                    s_and_b32 s25, s11, 0xffff
                    s_mov_b32 s26, {1536*2}
                    s_mov_b32 s27, 0x20000
                    s_lshl_b32 s60, s65, 7           ; block*64*2
                    v_lshlrev_b32 v60, 3, v3         ; h*8
                    """)
                    for ni in range(2):
                        for g in range(4):
                            r = ST + 36 + 2*(ni*4+g)
                            a(f"buffer_load_dwordx2 v[{r}:{r+1}], v60, s[24:27], s60 offen offset:{64*ni+16*g}")
                    a.label("K1_NOBIAS")
                step += 1
                if ks == NKS-1 and s == 1:
                    a(f"""
                    s_cmp_lg_u32 s62, 0
                    s_cbranch_scc1 K1_READY2_{tag}
                    s_waitcnt vmcnt(0)
                    v_readfirstlane_b32 s39, v{RS+15}
                    s_cmp_lt_u32 s39, {NARRIVE}
                    s_cbranch_scc1 K1_READY2_{tag}
                    """)
                    stat_loads(vmode)
                    a("s_mov_b32 s62, 1")
                    a.label(f"K1_READY2_{tag}")
                if s == 3 and ks in (0, 4): stamp(a, 2 + ks//4)
        stamp(a, 6)
        a(f"""
        v_add_f32 v{RS+4}, v{RS+4}, v{RS+5}
        v_add_f32 v{RS+6}, v{RS+6}, v{RS+7}
        v_mov_b32 v{RS+5}, v{RS+4}
        v_mov_b32 v{RS+7}, v{RS+6}
        s_nop 1
        v_permlane32_swap_b32 v{RS+4}, v{RS+5}
        v_permlane32_swap_b32 v{RS+6}, v{RS+7}
        s_nop 1
        v_add_f32 v{RS+4}, v{RS+4}, v{RS+5}
        v_add_f32 v{RS+6}, v{RS+6}, v{RS+7}
        v_cndmask_b32 v{RS+4}, v{RS+4}, v{RS+6}, s[48:49]
        s_lshl_b32 s39, s3, 8
        s_add_u32 s39, s39, {LDS_CSP}
        v_lshlrev_b32 v52, 2, v1
        v_add_u32 v53, s39, v52
        ds_write_b32 v53, v{RS+4}
        s_lshl_b32 s39, s37, 10
        s_add_u32 s39, s39, {LDS_CSP}
        v_add_u32 v53, s39, v52
        s_waitcnt lgkmcnt(0)
        s_barrier
        ds_read_b32 v56, v53
        ds_read_b32 v57, v53 offset:256
        ds_read_b32 v58, v53 offset:512
        ds_read_b32 v59, v53 offset:768
        s_cmp_lg_u32 s62, 0
        s_cbranch_scc1 K1_READY_{tag}
        s_mov_b32 s40, 0
        K1_SPIN_{tag}:
        global_load_dword v{RS+15}, v{RS+14}, s[52:53] sc1
        s_waitcnt vmcnt(0)
        v_readfirstlane_b32 s39, v{RS+15}
        s_cmp_ge_u32 s39, {NARRIVE}
        s_cbranch_scc1 K1_SPINDONE_{tag}
        s_sleep 4
        s_add_u32 s40, s40, 1
        s_cmp_lt_u32 s40, 0x40000
        s_cbranch_scc1 K1_SPIN_{tag}
        K1_SPINDONE_{tag}:
        """)
        stat_loads(vmode)
        a.label(f"K1_READY_{tag}")
        a(f"""
        s_waitcnt lgkmcnt(0)
        v_add_f32 v56, v56, v57
        v_add_f32 v58, v58, v59
        v_add_f32 v56, v56, v58
        """)
        if vmode:
            a(f"""
            v_mov_b32 v57, v56
            s_nop 1
            v_permlane32_swap_b32 v56, v57
            v_mov_b32 v{ST}, v56
            v_mov_b32 v{ST+1}, v57
            """)
        else:
            a(f"""
            s_lshl_b32 s39, s3, 8
            s_add_u32 s39, s39, {LDS_CS}
            v_add_u32 v53, s39, v52
            ds_write_b32 v53, v56
            v_lshlrev_b32 v55, 4, v3
            v_add_u32 v55, s39, v55          ; + h*16
            s_waitcnt lgkmcnt(0)
            """)
            for ni in range(2):
                for g in range(4):
                    r = ST + 4 + 4*(ni*4+g)
                    a(f"ds_read_b128 v[{r}:{r+3}], v55 offset:{128*ni+32*g}")
        a("s_waitcnt vmcnt(0) lgkmcnt(0)")
        stamp(a, 4)
    a.label("K1_MAIN_V")
    a("s_mov_b32 s48, 0")
    a("s_mov_b32 s49, -1")
    mainloop(True)
    a(f"""
    v_and_b32 v52, 31, v1
    s_sub_u32 s39, s66, 1280
    v_add_u32 v52, s39, v52
    s_lshl_b32 s40, s34, 3
    s_lshl_b32 s41, s36, 1
    s_add_u32 s40, s40, s41
    s_add_u32 s40, s40, s37
    s_xor_b32 s41, s40, 1
    s_mul_i32 s40, s40, 2560
    s_mul_i32 s41, s41, 2560
    s_add_u32 s40, s40, {WS_KV + 1280}
    s_add_u32 s41, s41, {WS_KV + 1280}
    s_movk_i32 s42, 3277
    s_mov_b32 s43, {163840}
    v_mul_u32_u24 v53, 20, v3        ; h*20
    """)
    for ni in range(2):
        a(f"""
        v_add_u32 v54, {ni*32}, v52
        v_mul_u32_u24 v55, s42, v54
        v_lshrrev_b32 v55, 16, v55       ; head
        v_mul_u32_u24 v56, 20, v55
        v_sub_u32 v56, v54, v56          ; d
        v_add_u32 v56, v56, v53          ; h*20+d
        v_mul_lo_u32 v55, v55, s43
        v_lshl_add_u32 v{58+ni}, v56, 4, v55
        """)
    t = FR[0]
    k = 0
    for mi in range(2):
        for ni in range(2):
            c = acc(mi, ni)
            for g in range(4):
                r = ST + 4 + 8*(mi*4+g)
                for j in range(4):
                    a(f"v_mul_f32 v{52+j}, v{r+4+j}, v{ST+ni}")
                for j in range(4):
                    a(f"v_fma_f32 v{c+4*g+j}, v{c+4*g+j}, v{r+j}, v{52+j}")
            for pv in range(2):
                r = t + 4*(k % 8); k += 1
                for d in range(4):
                    a(f"v_cvt_pk_bf16_f32 v{r+d}, v{c+8*pv+2*d}, v{c+8*pv+2*d+1}")
                a(f"buffer_store_dwordx4 v[{r}:{r+3}], v{58+ni}, s[20:23], s{40+mi} offen offset:{pv*640}")
    if STAMP:
        a("s_waitcnt vmcnt(0)")
        stamp(a, 5); stamp_end(a, 1, 7)
    a("s_endpgm")
    a.label("K1_MAIN_N")
    a("s_mov_b32 s48, 0")
    a("s_mov_b32 s49, -1")
    mainloop(False)
    a(f"""
    s_lshl_b32 s40, s34, 3
    s_lshl_b32 s41, s36, 1
    s_add_u32 s40, s40, s41
    s_add_u32 s40, s40, s37
    s_xor_b32 s41, s40, 1
    s_cmp_lg_u32 s64, 0
    s_cbranch_scc1 K1_EPI_H
    """)
    a(f"""
    s_cmp_lt_u32 s66, 640
    s_cselect_b32 s39, 0, 640
    s_cselect_b32 s43, {81920}, {163840}
    s_cselect_b32 s44, 1280, 2560
    s_cselect_b32 s45, {WS_QF}, {WS_KV}
    s_cselect_b32 s46, 0x{f32bits(QSCALE):08x}, 0x3f800000
    s_sub_u32 s39, s66, s39          ; n' base
    s_lshr_b32 s39, s39, 3
    v_add_u32 v52, s39, v3
    s_mul_i32 s40, s40, s44
    s_mul_i32 s41, s41, s44
    s_add_u32 s40, s40, s45
    s_add_u32 s41, s41, s45          ; mi=1
    s_add_u32 s60, s40, s43
    s_add_u32 s61, s41, s43
    s_movk_i32 s42, 0x3334
    v_and_b32 v53, 31, v1            ; key
    v_lshlrev_b32 v54, 4, v53        ; key*16
    v_lshlrev_b32 v53, 3, v53        ; key*8
    v_add_u32 v53, 1024, v53         ; 1024 + key*8
    """)
    for q in range(4):
        a(f"v_mul_f32 v{ST+q}, s46, v{ST+q}")
    k = 0
    for ni in range(2):
        for gp in range(2):
            a(f"""
            v_add_u32 v55, {ni*4+2*gp}, v52      ; uu
            v_mul_u32_u24 v56, s42, v55
            v_lshrrev_b32 v56, 16, v56           ; hp
            v_mul_u32_u24 v57, 5, v56
            v_sub_u32 v57, v55, v57              ; t
            v_lshlrev_b32 v56, 1, v56
            v_cmp_lt_u32 vcc, 2, v57
            v_cmp_eq_u32 s[58:59], 2, v57
            v_mul_lo_u32 v59, v56, s43
            v_subrev_u32 v58, 3, v57
            v_cndmask_b32 v58, v57, v58, vcc     ; slot
            v_mov_b32 v62, s43
            v_cndmask_b32 v62, 0, v62, vcc
            v_lshl_add_u32 v58, v58, 9, v54
            v_add3_u32 v58, v58, v59, v62
            v_add_u32 v59, v59, v53
            """)
            rr = []
            for mi in range(2):
                r = FR[0] + 4*(k % 8); k += 1
                rr.append(r)
                for gg in range(2):
                    g = 2*gp + gg
                    cs = ST + 4 + 4*(ni*4+g)
                    c = acc(mi, ni) + 4*g
                    for j in range(4):
                        a(f"v_mul_f32 v{ST+64+j}, v{ST+2*mi+1}, v{cs+j}")
                    for j in range(4):
                        a(f"v_fma_f32 v{c+j}, v{c+j}, v{ST+2*mi}, v{ST+64+j}")
                    a(f"v_cvt_pk_bf16_f32 v{r+2*gg}, v{c}, v{c+1}")
                    a(f"v_cvt_pk_bf16_f32 v{r+2*gg+1}, v{c+2}, v{c+3}")
                a("s_nop 1")
                a(f"v_permlane32_swap_b32 v{r}, v{r+2}")
                a(f"v_permlane32_swap_b32 v{r+1}, v{r+3}")
            lb = a.newlabel("K1_QKB")
            a("s_andn2_b64 exec, exec, s[58:59]")
            for mi in range(2):
                a(f"buffer_store_dwordx4 v[{rr[mi]}:{rr[mi]+3}], v58, s[20:23], s{40+mi} offen")
            a("s_mov_b64 exec, s[58:59]")
            a(f"s_cbranch_execz {lb}")
            for mi in range(2):
                a(f"buffer_store_dwordx2 v[{rr[mi]}:{rr[mi]+1}], v59, s[20:23], s{40+mi} offen")
                a(f"buffer_store_dwordx2 v[{rr[mi]+2}:{rr[mi]+3}], v59, s[20:23], s{60+mi} offen")
            a.label(lb)
            a("s_mov_b64 exec, -1")
    if STAMP:
        a("s_waitcnt vmcnt(0)")
        stamp(a, 5); stamp_end(a, 1, 7)
    a("s_endpgm")
    a.label("K1_EPI_H")
    a(f"""
    v_and_b32 v52, 31, v1
    v_lshlrev_b32 v52, 4, v52
    v_lshl_add_u32 v52, v3, 3, v52   ; key*16 + h*8
    s_mul_i32 s40, s40, {SN*1024}
    s_mul_i32 s41, s41, {SN*1024}
    s_lshl_b32 s39, s65, 2
    s_add_u32 s39, s39, {SO}
    s_lshl_b32 s39, s39, 10
    s_add_u32 s39, s39, {WS_AF}
    s_add_u32 s40, s40, s39
    s_add_u32 s41, s41, s39
    v_mov_b32 v53, 0x{f32bits(GC1):08x}
    """)
    k = 0
    BI = ST + 52
    a("v_lshlrev_b32 v52, 4, v1          ; lane*16")
    for ni in range(2):
        for gp in range(2):
            for gg in range(2):
                g = 2*gp + gg
                br = ST + 36 + 2*(ni*4+g)
                for d in range(2):
                    a(f"v_lshlrev_b32 v{BI+4*gg+2*d}, 16, v{br+d}")
                    a(f"v_and_b32 v{BI+4*gg+2*d+1}, 0xffff0000, v{br+d}")
            for mi in range(2):
                r = FR[0] + 4*(k % 8); k += 1
                for gg in range(2):
                    g = 2*gp + gg
                    cs = ST + 4 + 4*(ni*4+g)
                    c = acc(mi, ni) + 4*g
                    T = 54
                    for j in range(4): a(f"v_fma_f32 v{T+4+j}, v{ST+2*mi+1}, v{cs+j}, v{BI+4*gg+j}")
                    for j in range(4): a(f"v_fma_f32 v{c+j}, v{c+j}, v{ST+2*mi}, v{T+4+j}")
                    for j in range(4): a(f"v_mul_f32 v{T+j}, v{c+j}, v{c+j}")
                    for j in range(4): a(f"v_fmaak_f32 v{T+j}, v{T+j}, v53, 0x{f32bits(GC0):08x}")
                    for j in range(4): a(f"v_mul_f32 v{T+j}, v{T+j}, v{c+j}")
                    for j in range(4): a(f"v_exp_f32 v{T+j}, v{T+j}")
                    for j in range(4): a(f"v_add_f32 v{T+j}, 1.0, v{T+j}")
                    for j in range(4): a(f"v_rcp_f32 v{T+j}, v{T+j}")
                    for j in range(4): a(f"v_mul_f32 v{T+j}, v{T+j}, v{c+j}")
                    a(f"v_cvt_pk_bf16_f32 v{r+2*gg}, v{T}, v{T+1}")
                    a(f"v_cvt_pk_bf16_f32 v{r+2*gg+1}, v{T+2}, v{T+3}")
                a("s_nop 1")
                a(f"v_permlane32_swap_b32 v{r}, v{r+2}")
                a(f"v_permlane32_swap_b32 v{r+1}, v{r+3}")
                a(f"buffer_store_dwordx4 v[{r}:{r+3}], v52, s[20:23], s{40+mi} offen offset:{(ni*2+gp)*1024}")
    if STAMP:
        a("s_waitcnt vmcnt(0)")
        stamp(a, 5); stamp_end(a, 1, 7)
    a.label("K1_END")
    a("s_endpgm")
    gen_side(a)
    return a.text(), kernel_desc(name, 224, 102 if STAMP else 72), f"; @launch kernel={name} grid=(256,1,1) block=(512,1,1) lds={K1_LDS}"
```

```python
from asmlib import *
import os

K2_RING = 40960
K2_FLAG = 40960
K2_RED = 41984
K2_LDS = K2_RED + 81920

def gen_k2():
    a = Asm()
    name = "k2_attn_kernel"
    a.lines.append(kernel_header(name))
    NU = int(os.environ.get("K2NU", "1")); NAW = 8 // NU
    if NU == 2:
        Q = [4, 10]; QH = [8, 14]; NC = [16, 32]; O = [48, 64]; S = [[80, 96], [112, 128]]; P = [144, 152]
        KLb = [160, 166]; KHb = [164, 170]; V = [172, 180]
        vKa = 188; vKHa = 189; vVa = 190; vDma = 191; T = 192
        NVG = 204
    else:
        Q = [4]; QH = [8]; NC = [16]; O = [32]; S = [[48, 64]]; P = [80]
        KLb = [88, 10]; KHb = [92, 14]; V = [96, 104]
        vKa = 112; vKHa = 113; vVa = 114; vDma = 115; T = 116
        NVG = 168
    DPR = 8 // NAW
    a(f"""
    s_cmp_ge_u32 s2, 256
    s_cbranch_scc1 K2_END
    s_load_dwordx2 s[6:7], s[0:1], {KA_WS}
    s_load_dwordx2 s[8:9], s[0:1], {KA_X}
    s_load_dwordx2 s[10:11], s[0:1], {KA_B2}
    s_load_dwordx2 s[4:5], s[0:1], {KA_OUT}
    v_lshrrev_b32 v2, 6, v0
    v_and_b32 v1, 63, v0
    s_and_b32 s34, s2, 7
    s_lshl_b32 s34, s34, 2
    s_bfe_u32 s35, s2, 0x20003       ; (wg>>3)&3
    s_add_u32 s34, s34, s35          ; head
    s_lshr_b32 s35, s2, 5            ; qb
    v_readfirstlane_b32 s3, v2       ; w
    v_lshrrev_b32 v3, 5, v1          ; h
    v_and_b32 v2, 31, v1
    s_waitcnt lgkmcnt(0)
    """)
    stamp(a, 0)
    a(f"""
    s_mov_b32 s20, s6
    s_and_b32 s21, s7, 0xffff
    s_mov_b32 s22, {WS_END}
    s_mov_b32 s23, 0x20000
    s_cmp_ge_u32 s3, {NAW}
    s_cbranch_scc1 K2_GEMM
    {"s_setprio 2" if "prio" in os.environ.get("K2V","") else ""}
    s_lshl_b32 s35, s35, 3
    s_mul_i32 s36, s3, {NU}
    s_add_u32 s35, s35, s36          ; qtile (u=0)
    s_mov_b32 s40, 0x000fffff
    s_mov_b32 s41, 0x000fffff
    s_mov_b32 s42, 0
    s_mov_b32 s43, -1
    s_mov_b32 s44, -1
    s_mov_b32 s45, 0
    s_mov_b32 s46, 0
    s_mul_i32 s36, s34, 81920
    s_mul_i32 s37, s35, 1280
    s_add_u32 s36, s36, s37
    s_add_u32 s36, s36, {WS_QF}
    s_mul_i32 s37, s34, 163840
    s_add_u32 s37, s37, {WS_KV}
    v_lshlrev_b32 v{vKa}, 4, v1                 ; lane*16
    v_lshlrev_b32 v{vKHa}, 3, v2
    v_add_u32 v{vKHa}, 1024, v{vKHa}            ; 1024 + (l%32)*8
    v_mul_u32_u24 v{vVa}, 20, v3
    v_add_u32 v{vVa}, v{vVa}, v2
    v_lshlrev_b32 v{vVa}, 4, v{vVa}
    v_add_u32 v{vVa}, 1280, v{vVa}              ; 1280 + (h*20+d)*16
    s_mul_i32 s38, s3, {1024*DPR}
    v_add_u32 v{vDma}, s38, v{vKa}
    """)
    for u in range(NU):
        a(f"v_mov_b32 v{QH[u]}, 0")
        a(f"v_mov_b32 v{QH[u]+1}, 0")
    for u in range(NU):
        a(f"buffer_load_dwordx4 v[{Q[u]}:{Q[u]+3}], v{vKa}, s[20:23], s36 offen offset:{1280*u}")
    a("s_mov_b64 exec, s[44:45]")
    for u in range(NU):
        a(f"buffer_load_dwordx2 v[{QH[u]}:{QH[u]+1}], v{vKHa}, s[20:23], s36 offen offset:{1280*u}")
    a(f"""
    s_mov_b64 exec, -1
    v_mov_b32 v{T}, {K2_FLAG}
    v_mov_b32 v{T+1}, 0
    ds_write_b32 v{T}, v{T+1}
    ds_write_b32 v{T}, v{T+1} offset:4
    v_mov_b32 v{T+2}, 0
    v_mov_b32 v{T+3}, 0x3f803f80
    v_cmp_eq_u32 vcc, 20, v2
    v_cmp_eq_u32 s[48:49], 24, v2
    s_or_b64 vcc, vcc, s[48:49]
    s_nop 1
    v_cndmask_b32 v{T+2}, v{T+2}, v{T+3}, vcc
    """)
    for b in range(2):
        for r in range(8):
            a(f"v_mov_b32 v{V[b]+r}, v{T+2}")
    a.label("K2_RESTART")
    a("s_mov_b32 s39, s37")
    def dma(slot):
        a(f"s_add_u32 m0, s38, {slot*8192}")
        a("s_nop 0")
        for i_ in range(DPR):
            a(f"buffer_load_dwordx4 v{vDma}, s[20:23], s39 offen offset:{1024*i_} lds")
        a("s_add_u32 s39, s39, 8192")
    dma(0); dma(1); dma(2)
    for u in range(NU):
        for r in range(16):
            a(f"v_mov_b32 v{O[u]+r}, 0")
        for r in range(4, 8):
            a(f"v_mov_b32 v{P[u]+r}, 0")
    a(f"s_waitcnt vmcnt({2*DPR}) lgkmcnt(0)")
    a("s_barrier")
    dma(3)
    def readK(tt):
        off = (tt % 16) * 2560
        kl = KLb[tt % 2]; kh = KHb[tt % 2]
        a(f"ds_read_b128 v[{kl}:{kl+3}], v{vKa} offset:{off}")
        a(f"ds_read_b64 v[{kh}:{kh+1}], v{vKHa} offset:{off}")
    def readV(tt):
        off = (tt % 16) * 2560
        b = V[tt % 2]
        a("s_mov_b64 exec, s[40:41]")
        a(f"ds_read_b128 v[{b}:{b+3}], v{vVa} offset:{off}")
        a(f"ds_read_b128 v[{b+4}:{b+7}], v{vVa} offset:{off+640}")
        a("s_mov_b64 exec, -1")
    KL = KLb[0]; KH = KHb[0]
    def qk(u, sb, c):
        a(f"v_mfma_f32_32x32x16_bf16 v[{sb}:{sb+15}], v[{KL}:{KL+3}], v[{Q[u]}:{Q[u]+3}], {c}")
        a(f"v_mfma_f32_32x32x8_bf16 v[{sb}:{sb+15}], v[{KH}:{KH+1}], v[{QH[u]}:{QH[u]+1}], v[{sb}:{sb+15}]")
    def maxtree(sb, dst, first):
        if first:
            a(f"v_max3_f32 v{dst}, v{sb}, v{sb+1}, v{sb+2}")
            a(f"v_max_f32 v{dst}, v{dst}, v{sb+3}")
            rng = range(4, 16, 2)
        else:
            rng = range(0, 16, 2)
        for i in rng:
            a(f"v_max3_f32 v{dst}, v{dst}, v{sb+i}, v{sb+i+1}")
    def crosshalf_to_nc(u, m):
        a(f"""
        v_mov_b32 v{T+2}, v{m}
        v_mov_b32 v{T+3}, v{m}
        s_nop 1
        v_permlane32_swap_b32 v{T+2}, v{T+3}
        s_nop 1
        v_max_f32 v{T+2}, v{T+2}, v{T+3}
        """)
        for r in range(16):
            a(f"v_sub_f32 v{NC[u]+r}, 0, v{T+2}")
    readK(0)
    a("s_waitcnt lgkmcnt(0)")
    a(f"""
    s_cmp_lg_u32 s46, 0
    s_cbranch_scc1 K2_HAVE_NC
    """)
    for u in range(NU): qk(u, S[u][0], "0")
    a("s_nop 15")
    for u in range(NU):
        maxtree(S[u][0], T+4+u, True)
    for u in range(NU):
        crosshalf_to_nc(u, T+4+u)
    a("s_nop 1")
    a.label("K2_HAVE_NC")
    for u in range(NU):
        qk(u, S[u][0], f"v[{NC[u]}:{NC[u]+15}]")
    readK(1)
    readV(0)
    a("s_mov_b32 s47, 0")
    stamp(a, 1)
    a.label("K2_LOOP")
    sync_at = {1:4, 4:0, 7:1, 10:2, 14:3}
    for tt in range(16):
        vb = V[tt % 2]; vp = V[(tt+1) % 2]
        kl = KLb[(tt+1) % 2]; kh = KHb[(tt+1) % 2]
        for u in range(NU):
            sc = S[u][tt % 2]; sn = S[u][(tt+1) % 2]; Pu = P[u]; Ou = O[u]
            def e(i): a(f"v_exp_f32 v{sc+i}, v{sc+i}")
            def c(j): a(f"v_cvt_pk_bf16_f32 v{Pu+j}, v{sc+2*j}, v{sc+2*j+1}")
            if u == 0: a("s_waitcnt lgkmcnt(2)")
            a(f"v_mfma_f32_32x32x16_bf16 v[{sn}:{sn+15}], v[{kl}:{kl+3}], v[{Q[u]}:{Q[u]+3}], v[{NC[u]}:{NC[u]+15}]")
            e(0); e(1); e(2); c(0); e(3)
            a(f"v_mfma_f32_32x32x16_bf16 v[{Ou}:{Ou+15}], v[{vp+4}:{vp+7}], v[{Pu+4}:{Pu+7}], v[{Ou}:{Ou+15}]")
            if u == NU-1:
                if tt in sync_at:
                    a(f"s_waitcnt vmcnt({2*DPR}) lgkmcnt(0)")
                    a("s_barrier")
                    dma(sync_at[tt])
                readK(tt+2)
                readV(tt+1)
            e(4); c(1); e(5); e(6); c(2); e(7)
            a(f"v_mfma_f32_32x32x8_bf16 v[{sn}:{sn+15}], v[{kh}:{kh+1}], v[{QH[u]}:{QH[u]+1}], v[{sn}:{sn+15}]")
            e(8); c(3); e(9); e(10); c(4); e(11)
            if u == 0: a(f"s_waitcnt lgkmcnt({0 if NU == 2 else 4})")
            a(f"v_mfma_f32_32x32x16_bf16 v[{Ou}:{Ou+15}], v[{vb}:{vb+3}], v[{Pu}:{Pu+3}], v[{Ou}:{Ou+15}]")
            e(12); e(13); c(5); e(14); e(15); c(6); c(7)
    a(f"""
    s_add_u32 s47, s47, 1
    s_cmp_lt_u32 s47, 4
    s_cbranch_scc1 K2_LOOP
    """)
    for u in range(NU):
        a(f"v_mfma_f32_32x32x16_bf16 v[{O[u]}:{O[u]+15}], v[{V[1]+4}:{V[1]+7}], v[{P[u]+4}:{P[u]+7}], v[{O[u]}:{O[u]+15}]")
    stamp(a, 2)
    a(f"""
    s_nop 15
    v_cndmask_b32 v{T+4}, v{O[0]+12}, v{O[0]+8}, s[42:43]     ; l (u=0)
    v_cndmask_b32 v{T+5}, v{O[NU-1]+12}, v{O[NU-1]+8}, s[42:43]     ; l (u=1)
    s_cmp_eq_u32 s46, 0
    s_cbranch_scc1 K2_CHECK
    s_waitcnt vmcnt(0) lgkmcnt(0)
    s_barrier
    s_branch K2_FINISH
    K2_CHECK:
    v_mov_b32 v{T+6}, 0x5d800000
    v_cmp_nlt_f32 vcc, v{T+4}, v{T+6}
    v_cmp_nlt_f32 s[48:49], v{T+5}, v{T+6}
    v_mov_b32 v{T}, {K2_FLAG}
    v_mov_b32 v{T+1}, 1
    s_or_b64 vcc, vcc, s[48:49]
    s_and_saveexec_b64 s[48:49], vcc
    s_cbranch_execz K2_NOBAD
    ds_write_b32 v{T}, v{T+1}
    K2_NOBAD:
    s_mov_b64 exec, -1
    s_waitcnt vmcnt(0) lgkmcnt(0)
    s_barrier
    ds_read_b32 v{T+1}, v{T}
    s_waitcnt lgkmcnt(0)
    v_readfirstlane_b32 s48, v{T+1}
    s_cmp_eq_u32 s48, 0
    s_cbranch_scc1 K2_FINISH
    s_mov_b32 s46, 1
    s_mov_b32 s39, s37
    s_mov_b32 s47, 0
    v_mov_b32 v{T+4}, 0xff800000
    v_mov_b32 v{T+5}, 0xff800000
    K2_MAXLOOP:
    buffer_load_dwordx4 v[{KL}:{KL+3}], v{vKa}, s[20:23], s39 offen
    buffer_load_dwordx2 v[{KH}:{KH+1}], v{vKHa}, s[20:23], s39 offen
    s_waitcnt vmcnt(0)
    """)
    for u in range(NU): qk(u, S[u][0], "0")
    a("s_nop 15")
    for u in range(NU):
        maxtree(S[u][0], T+4+u, False)
    a(f"""
    s_add_u32 s39, s39, 2560
    s_add_u32 s47, s47, 1
    s_cmp_lt_u32 s47, 64
    s_cbranch_scc1 K2_MAXLOOP
    """)
    for u in range(NU):
        crosshalf_to_nc(u, T+4+u)
    a("s_barrier")
    a("s_branch K2_RESTART")
    a.label("K2_FINISH")
    assert NU == 1
    a(f"""
    v_rcp_f32 v{T+4}, v{T+4}
    s_mul_i32 s48, s35, {SN*1024}
    s_mul_i32 s49, s34, 1536
    s_add_u32 s48, s48, s49
    s_add_u32 s48, s48, {WS_AF}
    """)
    Ou = O[0]; Pu = P[0]
    for r in range(12):
        a(f"v_mul_f32 v{Ou+r}, v{Ou+r}, v{T+4}")
    for g in range(3):
        a(f"v_cvt_pk_bf16_f32 v{Pu+2*g}, v{Ou+4*g}, v{Ou+4*g+1}")
        a(f"v_cvt_pk_bf16_f32 v{Pu+2*g+1}, v{Ou+4*g+2}, v{Ou+4*g+3}")
    a(f"""
    v_mov_b32 v{Pu+6}, 0
    v_mov_b32 v{Pu+7}, 0
    v_permlane32_swap_b32 v{Pu}, v{Pu+2}
    v_permlane32_swap_b32 v{Pu+1}, v{Pu+3}
    buffer_store_dwordx4 v[{Pu}:{Pu+3}], v{vKa}, s[20:23], s48 offen sc1
    s_mov_b64 exec, s[44:45]
    buffer_store_dwordx4 v[{Pu+4}:{Pu+7}], v{vKa}, s[20:23], s48 offen offset:1024 sc1
    """)
    a(f"""
    s_mov_b64 exec, 1
    s_lshl_b32 s54, s35, 7
    s_add_u32 s54, s54, {WS_CNT}
    v_mov_b32 v{T}, s54
    v_mov_b32 v{T+1}, 1
    s_waitcnt vmcnt(0)
    global_atomic_add v{T}, v{T+1}, s[6:7] sc1
    s_mov_b64 exec, -1
    """)
    if STAMP:
        a("s_waitcnt vmcnt(0)")
        stamp(a, 3); stamp_end(a, 2, 4)
    a("s_endpgm")
    a.label("K2_GEMM")
    NS = 24; DEPTH = 3
    pat = [1,1,1,2]*4 + [1,2,1]
    assert sum(pat) == 24 and len(pat) == 19
    BAR_AFTER = set()
    acc_ = 0
    for p_ in pat:
        acc_ += p_; BAR_AFTER.add(acc_-1)
    ACC = 16; FB = 96
    a(f"""
    s_sub_u32 s36, s3, {NAW}             ; g
    s_lshl_b32 s35, s35, 3
    s_lshr_b32 s39, s34, 2
    s_add_u32 s39, s39, s35
    s_and_b32 s35, s34, 3            ; ng
    s_mov_b32 s34, s39
    v_lshlrev_b32 v4, 4, v1          ; lane*16
    v_add_u32 v5, 4096, v4
    s_mul_i32 s39, s36, {NS}
    s_add_u32 s39, s39, {SO}         ; first s
    s_mul_i32 s37, s34, {SN*1024}
    s_add_u32 s37, s37, {WS_AF}
    s_mul_i32 s38, s36, {12*1024}
    s_add_u32 s55, s37, s38
    s_lshl_b32 s38, s39, 10
    s_add_u32 s37, s37, s38          ; A soffset
    s_mul_i32 s38, s39, 20
    s_mul_i32 s39, s35, 5
    s_add_u32 s38, s38, s39
    s_lshl_b32 s38, s38, 10
    s_add_u32 s38, s38, {WS_WF}      ; B soffset
    s_mul_i32 s56, s36, 240
    s_add_u32 s56, s56, s39
    s_lshl_b32 s56, s56, 10
    s_add_u32 s56, s56, {WS_WF}
    """)
    def loadB(F, sreg):
        for j in range(4):
            a(f"buffer_load_dwordx4 v[{F+4+4*j}:{F+7+4*j}], v4, s[20:23], {sreg} offen offset:{1024*j}")
        a(f"buffer_load_dwordx4 v[{F+20}:{F+23}], v5, s[20:23], {sreg} offen")
        a(f"s_add_u32 {sreg}, {sreg}, 20480")
    def loads(i):
        F = FB + (i % DEPTH)*24
        a(f"buffer_load_dwordx4 v[{F}:{F+3}], v4, s[20:23], s37 offen")
        loadB(F, "s38")
        a("s_add_u32 s37, s37, 1024")
    def mm(F, A=None):
        A = F if A is None else A
        for j in range(5):
            c = ACC + 16*j
            a(f"v_mfma_f32_32x32x16_bf16 v[{c}:{c+15}], v[{F+4+4*j}:{F+7+4*j}], v[{A}:{A+3}], v[{c}:{c+15}]")
    for i in range(DEPTH-1): loads(i)
    for r in range(80): a(f"v_mov_b32 v{ACC+r}, 0")
    a("s_barrier")
    for i in range(NS):
        if i + DEPTH - 1 < NS:
            loads(i + DEPTH - 1)
        rem = min(DEPTH-1, NS-1-i)
        a(f"s_waitcnt vmcnt({6*rem})")
        mm(FB + (i % DEPTH)*24)
        if i in BAR_AFTER: a("s_barrier")
    NL = 4
    a(f"""
    s_mul_i32 s40, s36, 20480
    s_add_u32 s40, s40, {K2_RED}
    v_add_u32 v8, s40, v4
    """)
    for st in range(NL):
        a(f"s_add_u32 m0, s40, {st*5120}")
        a("s_nop 0")
        for j in range(4):
            a(f"buffer_load_dwordx4 v4, s[20:23], s56 offen offset:{1024*j} lds")
        a(f"s_add_u32 m0, s40, {st*5120+4096}")
        a("s_nop 0")
        a(f"buffer_load_dwordx4 v5, s[20:23], s56 offen lds")
        a("s_add_u32 s56, s56, 20480")
    loadB(FB, "s56")
    loadB(FB+24, "s56")
    XB = FB + 52
    a(f"""
    s_mov_b32 s12, s8
    s_and_b32 s13, s9, 0xffff
    s_mov_b32 s14, {2048*1280}
    s_mov_b32 s15, 0x20000
    s_mov_b32 s16, s10
    s_and_b32 s17, s11, 0xffff
    s_mov_b32 s18, 1280
    s_mov_b32 s19, 0x20000
    s_mov_b32 s24, s4
    s_and_b32 s25, s5, 0xffff
    s_mov_b32 s26, {2048*1280}
    s_mov_b32 s27, 0x20000
    s_mul_i32 s39, s35, 320
    s_mul_i32 s41, s36, 80           ; 5g*8*2 bytes
    s_add_u32 s39, s39, s41
    v_lshlrev_b32 v6, 3, v3          ; 4h*2
    v_add_u32 v6, s39, v6            ; b2 voff
    s_lshl_b32 s41, s34, 5
    v_add_u32 v7, s41, v2            ; token
    s_movk_i32 s41, 1280
    v_mul_lo_u32 v7, v7, s41
    v_add_u32 v7, v7, v6
    """)
    for e in range(5):
        a(f"buffer_load_dwordx2 v[{XB+4*e}:{XB+4*e+1}], v7, s[12:15], 0 offen offset:{16*e}")
        a(f"buffer_load_dwordx2 v[{XB+4*e+2}:{XB+4*e+3}], v6, s[16:19], 0 offen offset:{16*e}")
    a(f"""
    v_mov_b32 v9, {K2_FLAG}
    s_barrier                        ; B20
    s_barrier
    ds_read_b32 v10, v9
    s_waitcnt lgkmcnt(0)
    v_readfirstlane_b32 s41, v10
    s_cmp_eq_u32 s41, 0
    s_cbranch_scc1 K2_G_NOFB
    s_mov_b32 s41, 0
    K2_G_FB:
    s_barrier
    s_add_u32 s41, s41, 1
    s_cmp_lt_u32 s41, 23
    s_cbranch_scc1 K2_G_FB
    K2_G_NOFB:
    s_mul_i32 s43, s36, 10240
    v_add_u32 v11, s43, v4
    """)
    for st in range(2):
        a(f"s_add_u32 m0, s43, {st*5120}")
        a("s_nop 0")
        for j in range(4):
            a(f"buffer_load_dwordx4 v4, s[20:23], s56 offen offset:{1024*j} lds")
        a(f"s_add_u32 m0, s43, {st*5120+4096}")
        a("s_nop 0")
        a(f"buffer_load_dwordx4 v5, s[20:23], s56 offen lds")
        a("s_add_u32 s56, s56, 20480")
    a(f"""
    s_cmp_lg_u32 s36, 0
    s_cbranch_scc1 K2_G_GO
    s_lshl_b32 s54, s34, 7
    s_add_u32 s54, s54, {WS_CNT}
    v_mov_b32 v9, s54
    s_mov_b32 s41, 0
    K2_G_SPIN:
    s_sleep {1 if 'fastpoll' in os.environ.get('K2V','') else 6}
    global_load_dword v10, v9, s[6:7] sc1
    s_waitcnt vmcnt(0)
    v_readfirstlane_b32 s42, v10
    s_cmp_ge_u32 s42, 32
    s_cbranch_scc1 K2_G_GO
    s_add_u32 s41, s41, 1
    s_cmp_lt_u32 s41, 0x100000
    s_cbranch_scc1 K2_G_SPIN
    K2_G_GO:
    s_waitcnt vmcnt(0)
    s_barrier
    """)
    stamp(a, 1)
    AS = [FB, FB+24, FB+48, 12]
    order = [4, 5, 0, 1, 8, 2, 9, 3, 10, 6, 11, 7]
    def loadA(k):
        st = order[k]
        r = AS[k % 4]
        off = st*1024
        if off < 4096: a(f"buffer_load_dwordx4 v[{r}:{r+3}], v4, s[20:23], s55 offen offset:{off} sc1")
        elif off < 8192: a(f"buffer_load_dwordx4 v[{r}:{r+3}], v5, s[20:23], s55 offen offset:{off-4096} sc1")
        else: a(f"buffer_load_dwordx4 v[{r}:{r+3}], v5, s[20:23], s57 offen offset:{off-8192} sc1")
    a("s_add_u32 s57, s55, 4096")
    def ldsB(st, F):
        for j in range(5):
            if st < NL: a(f"ds_read_b128 v[{F+4+4*j}:{F+7+4*j}], v8 offset:{st*5120+1024*j}")
            else:       a(f"ds_read_b128 v[{F+4+4*j}:{F+7+4*j}], v11 offset:{(st-6)*5120+1024*j}")
    b0, b1 = FB, FB+24
    out = []
    def issueA(k):
        loadA(k); out.append(("A", k))
    def issueB(F, st):
        loadB(F, "s56"); out.extend([("B", st)]*5)
    def wait_for(tags, lgkm=False):
        last = max([i_ for i_, t in enumerate(out) if t in tags], default=-1)
        n = len(out) - 1 - last
        w = []
        if last >= 0: w.append(f"vmcnt({n})")
        if lgkm: w.append("lgkmcnt(0)")
        if w: a("s_waitcnt " + " ".join(w))
        del out[:last+1]
    for k in range(4): issueA(k)
    bufB = {4: b0, 5: b1, 0: b1, 1: b1, 8: b0, 2: b1, 9: b0, 3: b1, 10: b0, 6: b1, 11: b0, 7: b1}
    refill = {4: ("g", 8), 5: ("l", 0), 0: ("l", 1), 1: ("l", 2), 8: ("g", 9), 2: ("l", 3), 9: ("g", 10), 3: ("l", 6), 10: ("g", 11), 6: ("l", 7)}
    LDS_STEPS = {0, 1, 2, 3, 6, 7}
    for k, st in enumerate(order):
        wait_for({("A", k), ("B", st)}, lgkm=(st in LDS_STEPS))
        mm(bufB[st], AS[k % 4])
        if k + 4 < len(order): issueA(k + 4)
        if st in refill:
            kind, nst = refill[st]
            assert bufB[nst] == bufB[st]
            if kind == "g": issueB(bufB[st], nst)
            else: ldsB(nst, bufB[st])
    stamp(a, 2)
    a("s_nop 15")
    for idx in range(20):
        c = ACC + 4*idx
        a(f"ds_write_b128 v8, v[{c}:{c+3}] offset:{1024*idx}")
    a(f"""
    s_mul_i32 s40, s36, 5120
    s_add_u32 s40, s40, {K2_RED}
    v_add_u32 v9, s40, v4
    v_add_u32 v10, 0xA000, v9
    s_waitcnt lgkmcnt(0)
    s_barrier
    """)
    RB = ACC
    for e in range(5):
        for ww in range(4):
            base = 9 if ww < 2 else 10
            a(f"ds_read_b128 v[{RB+16*e+4*ww}:{RB+16*e+4*ww+3}], v{base} offset:{(ww%2)*20480 + 1024*e}")
    for e in range(5):
        r = RB + 16*e
        xb = XB + 4*e
        TT = FB
        for d in range(2):
            a(f"v_lshlrev_b32 v{TT+2*d}, 16, v{xb+d}")
            a(f"v_and_b32 v{TT+1+2*d}, 0xffff0000, v{xb+d}")
            a(f"v_lshlrev_b32 v{TT+4+2*d}, 16, v{xb+2+d}")
            a(f"v_and_b32 v{TT+5+2*d}, 0xffff0000, v{xb+2+d}")
        for j in range(4):
            a(f"v_add_f32 v{TT+j}, v{TT+j}, v{TT+4+j}")
        a(f"s_waitcnt lgkmcnt({min(15,4*(4-e))})")
        for j in range(4):
            a(f"v_add_f32 v{r+j}, v{r+j}, v{r+4+j}")
            a(f"v_add_f32 v{r+8+j}, v{r+8+j}, v{r+12+j}")
        for j in range(4):
            a(f"v_add_f32 v{r+j}, v{r+j}, v{r+8+j}")
        for j in range(4):
            a(f"v_add_f32 v{r+j}, v{r+j}, v{TT+j}")
        a(f"v_cvt_pk_bf16_f32 v{r+12}, v{r}, v{r+1}")
        a(f"v_cvt_pk_bf16_f32 v{r+13}, v{r+2}, v{r+3}")
        a(f"buffer_store_dwordx2 v[{r+12}:{r+13}], v7, s[24:27], 0 offen offset:{16*e}")
    if STAMP:
        a("s_waitcnt vmcnt(0)")
        stamp(a, 3); stamp_end(a, 3, 4)
    a.label("K2_END")
    a("s_endpgm")
    return a.text(), kernel_desc(name, NVG, 102 if STAMP else 64), f"; @launch kernel={name} grid=(256,1,1) block=({(NAW+4)*64},1,1) lds={K2_LDS}"
```
